```python
import torch

def _softmax(x, axis=-1):
    return torch.softmax(x, dim=axis)
def _gelu(x):
    return torch.nn.functional.gelu(x, approximate="tanh")
def _silu(x):
    return torch.nn.functional.silu(x)
def _sigmoid(x):
    return torch.sigmoid(x)
def _layernorm(x, axis=-1, eps=1e-5):
    m = x.mean(dim=axis, keepdim=True)
    v = x.var(dim=axis, keepdim=True, unbiased=False)
    return (x - m) / torch.sqrt(v + eps)
def _scatter_add(tgt, idx, src, axis=0):
    return tgt.clone().index_add_(axis, idx, src)
def _segment_sum(src, seg, n):
    out = torch.zeros((n,) + src.shape[1:], dtype=src.dtype)
    return out.index_add_(0, seg, src)
def _pad(x, pw):
    flat = tuple(v for pair in reversed(pw) for v in pair)
    return torch.nn.functional.pad(x, flat)

kernel_name = 'sequential_preLN__ssm_conv_h3__glu_gated_glu__prompt'

def setup_inputs():

    _w = (lambda a: (lambda t: t.to(torch.bfloat16) if t.is_floating_point() else t)(torch.as_tensor(a)))
    def _A_setup():
        B, S, D = 1, 2048, 448
        ks = 4
        return {
            "q": _w((lambda *s: torch.randn(*s, dtype=torch.bfloat16) * 0.05)(B, S, D)),
            "k": _w((lambda *s: torch.randn(*s, dtype=torch.bfloat16) * 0.4)(B, S, D)),
            "v": _w((lambda *s: torch.randn(*s, dtype=torch.bfloat16) * 0.4)(B, S, D)),
            "shift_k": _w((lambda *s: torch.randn(*s, dtype=torch.bfloat16) * 0.4)(D, ks) * 0.5),
            "ssm_k": _w((lambda *s: torch.randn(*s, dtype=torch.bfloat16) * 0.4)(D, S) * (1.0 / S ** 0.5)),
            "ssm_D": _w((lambda *s: torch.randn(*s, dtype=torch.bfloat16) * 0.4)(D)),
        }
    _A_in = _A_setup()

    def _B_setup():
        B, S, D, F = 1, 2048, 448, 1792
        return {
            "x": _w((lambda *s: torch.randn(*s, dtype=torch.bfloat16) * 0.05)(B, S, D)),
            "w_gate": _w((lambda *s: torch.randn(*s, dtype=torch.bfloat16) * 0.05)(D, F)),
            "w_up": _w((lambda *s: torch.randn(*s, dtype=torch.bfloat16) * 0.05)(D, F)),
            "w_down": _w((lambda *s: torch.randn(*s, dtype=torch.bfloat16) * 0.05)(F, D)),
        }
    _B_in = _B_setup()

    return {
        "A_q": _A_in["q"],
        "A_k": _A_in["k"],
        "A_v": _A_in["v"],
        "A_shift_k": _A_in["shift_k"],
        "A_ssm_k": _A_in["ssm_k"],
        "A_ssm_D": _A_in["ssm_D"],
        "B_x": _B_in["x"],
        "B_w_gate": _B_in["w_gate"],
        "B_w_up": _B_in["w_up"],
        "B_w_down": _B_in["w_down"],
    }

def reference(A_q, A_k, A_v, A_shift_k, A_ssm_k, A_ssm_D, B_x, B_w_gate, B_w_up, B_w_down):
    def _A_ref(q, k, v, shift_k, ssm_k, ssm_D):
        B, S, D = q.shape
        ks = shift_k.shape[-1]
        k_pad = _pad(k, ((0, 0), (ks - 1, 0), (0, 0)))
        k_shift = torch.zeros_like(k)
        for t in range(ks):
            k_shift = k_shift + k_pad[:, t:t + S, :] * shift_k[:, ks - 1 - t][None, None, :]
        kv = k_shift * v
        L = 2 * S
        kv_pad = _pad(kv, ((0, 0), (0, S), (0, 0)))
        kf_pad = _pad(ssm_k, ((0, 0), (0, S)))
        kv_f = (lambda x, axes=(-2,-1): torch.fft.rfft2(x.float(), dim=axes))(kv_pad[:, None, :, :], axes=(1, 2))
        kf_f = (lambda x, axes=(-2,-1): torch.fft.rfft2(x.float(), dim=axes))(kf_pad[:, None, :], axes=(1, 2))
        kf_f = (lambda x, *d: x.permute(*d))(kf_f, 1, 2, 0)
        y_f = kv_f * kf_f[None, :, :, :]
        y = (lambda x, s, axes=(-2,-1): torch.fft.irfft2(x, s=s, dim=axes).to(torch.bfloat16))(y_f, (1, L), axes=(1, 2))[:, 0, :S, :]
        y = y + kv * ssm_D[None, None, :]
        return q * y

    def _B_ref(x, w_gate, w_up, w_down):
        g = torch.einsum("bsd,df->bsf", x, w_gate)
        u = torch.einsum("bsd,df->bsf", x, w_up)
        h = _sigmoid(g) * u
        return torch.einsum("bsf,fd->bsd", h, w_down)

    x = A_q
    h = x + _A_ref(_layernorm(x, axis=-1), A_k, A_v, A_shift_k, A_ssm_k, A_ssm_D)
    h2 = h + _B_ref(_layernorm(h, axis=-1), B_w_gate, B_w_up, B_w_down)
    return h2
```

```python
import re

REG_RE = re.compile(r'^(-|\|)?(-)?([vas])(\d+)\|?$')
RNG_RE = re.compile(r'^(-)?([vas])\[(\d+):(\d+)\]$')

def regs_of(tok):
    tok = tok.strip()
    tok = tok.replace('abs(', '').replace(')', '').replace('|', '')
    if tok.startswith('-'):
        tok = tok[1:]
    m = re.match(r'^([vas])(\d+)$', tok)
    if m:
        return [(m.group(1), int(m.group(2)))]
    m = re.match(r'^([vas])\[(\d+):(\d+)\]$', tok)
    if m:
        return [(m.group(1), i) for i in range(int(m.group(2)), int(m.group(3)) + 1)]
    if tok == 'vcc':
        return [('x', 'vcc')]
    if tok in ('vcc_lo', 'vcc_hi'):
        return [('x', 'vcc')]
    if tok in ('exec', 'exec_lo', 'exec_hi'):
        return [('x', 'exec')]
    if tok == 'm0':
        return [('x', 'm0')]
    return []

def split_ops(s):
    out, depth, cur = [], 0, ''
    for ch in s:
        if ch in '[(':
            depth += 1
        if ch in '])':
            depth -= 1
        if ch == ',' and depth == 0:
            out.append(cur.strip()); cur = ''
        else:
            cur += ch
    if cur.strip():
        out.append(cur.strip())
    return out

TRANS = ('v_exp_f32', 'v_log_f32', 'v_rcp_f32', 'v_rsq_f32', 'v_sqrt_f32', 'v_sin_f32', 'v_cos_f32', 'v_rcp_iflag_f32')

class Ins:
    __slots__ = ('text', 'op', 'kind', 'defs', 'uses', 'tag', 'mods', 'srcC', 'srcAB', 'dpp', 'wide_store_data', 'comment')
    def __init__(self, text, tag=None):
        self.text = text
        self.tag = tag
        self.defs = []
        self.uses = []
        self.srcC = []
        self.srcAB = []
        self.dpp = False
        self.wide_store_data = []
        t = text.strip()
        if t.endswith(':'):
            self.kind = 'label'; self.op = t[:-1]; return
        if t.startswith(';') or t == '' or t.startswith('.'):
            self.kind = 'pseudo'; self.op = t; return
        if t.startswith('@'):
            self.kind = 'directive'; self.op = t; return
        parts = t.split(None, 1)
        op = parts[0]
        self.op = op
        rest = parts[1] if len(parts) > 1 else ''
        ops = split_ops(rest)
        mods = ''
        if ops:
            lp = ops[-1].split(None, 1)
            ops[-1] = lp[0]
            mods = lp[1] if len(lp) > 1 else ''
        self.mods = mods
        R = regs_of
        if op.startswith('v_mfma'):
            self.kind = 'mfma'
            self.defs = R(ops[0]); self.srcAB = R(ops[1]) + R(ops[2]); self.srcC = R(ops[3])
            self.uses = self.srcAB + self.srcC
        elif op.startswith('v_'):
            self.kind = 'valu'
            base = op.replace('_e32', '').replace('_e64', '').replace('_dpp', '').replace('_sdwa', '')
            self.dpp = op.endswith('_dpp') or 'row_' in mods or 'quad_perm' in mods or 'wave_' in mods
            if base.startswith('v_cmp'):
                self.defs = R(ops[0]); self.uses = sum((R(o) for o in ops[1:]), [])
                if base.startswith('v_cmpx'):
                    self.defs += [('x', 'exec')]
            elif base.startswith('v_permlane') and 'swap' in base:
                self.defs = R(ops[0]) + R(ops[1]); self.uses = list(self.defs)
            elif base in ('v_add_co_u32', 'v_sub_co_u32', 'v_subrev_co_u32'):
                self.defs = R(ops[0]) + R(ops[1]); self.uses = sum((R(o) for o in ops[2:]), [])
            elif base in ('v_addc_co_u32', 'v_subb_co_u32'):
                self.defs = R(ops[0]) + R(ops[1]); self.uses = sum((R(o) for o in ops[2:]), [])
            elif base in ('v_fmac_f32', 'v_dot2c_f32_bf16', 'v_writelane_b32', 'v_pk_fmac_f16'):
                self.defs = R(ops[0]); self.uses = R(ops[0]) + sum((R(o) for o in ops[1:]), [])
            elif base == 'v_nop':
                pass
            else:
                self.defs = R(ops[0]); self.uses = sum((R(o) for o in ops[1:]), [])
                if self.dpp:
                    self.uses += R(ops[0])
                if base == 'v_cndmask_b32' and len(ops) == 3:
                    self.uses += [('x', 'vcc')]
            self.uses += [('x', 'exec')]
        elif op.startswith('ds_'):
            self.kind = 'ds'
            if op.startswith('ds_read') or op.startswith('ds_bpermute') or op.startswith('ds_permute') or op.startswith('ds_swizzle'):
                self.defs = R(ops[0]); self.uses = sum((R(o) for o in ops[1:]), [])
            else:
                self.uses = sum((R(o) for o in ops), [])
        elif op.startswith('buffer_') or op.startswith('global_'):
            self.kind = 'vmem'
            is_lds = (' lds' in (' ' + mods)) or op.startswith('global_load_lds')
            if op.startswith('buffer_load'):
                if is_lds:
                    self.uses = sum((R(o) for o in ops), []) + [('x', 'm0')]
                else:
                    self.defs = R(ops[0]); self.uses = sum((R(o) for o in ops[1:]), [])
                    if 'd16' in op:
                        self.uses += R(ops[0])
            elif op.startswith('buffer_store'):
                self.uses = sum((R(o) for o in ops), [])
                if 'x3' in op or 'x4' in op:
                    self.wide_store_data = R(ops[0])
            elif op.startswith('buffer_atomic'):
                self.uses = sum((R(o) for o in ops), [])
                if 'sc0' in mods:
                    self.defs = R(ops[0])
            elif op.startswith('global_load_lds'):
                self.uses = sum((R(o) for o in ops), []) + [('x', 'm0')]
            elif op.startswith('global_load'):
                self.defs = R(ops[0]); self.uses = sum((R(o) for o in ops[1:]), [])
            elif op.startswith('global_store'):
                self.uses = sum((R(o) for o in ops), [])
                if 'x3' in op or 'x4' in op:
                    self.wide_store_data = R(ops[1])
            elif op.startswith('global_atomic'):
                self.uses = sum((R(o) for o in ops), [])
            elif op.startswith('buffer_wbl2') or op.startswith('buffer_inv'):
                pass
            else:
                raise ValueError('vmem? ' + text)
        elif op.startswith('s_load') or op.startswith('s_buffer_load') or op in ('s_memtime', 's_memrealtime'):
            self.kind = 'smem'
            self.defs = R(ops[0]); self.uses = sum((R(o) for o in ops[1:]), [])
        elif op.startswith('s_'):
            if op in ('s_waitcnt', 's_nop', 's_barrier', 's_endpgm', 's_sleep', 's_setprio'):
                self.kind = 'sctl'
            elif op.startswith('s_cbranch') or op == 's_branch':
                self.kind = 'branch'
            else:
                self.kind = 'salu'
                if op.startswith('s_cmp') or op.startswith('s_bitcmp'):
                    self.uses = sum((R(o) for o in ops), [])
                elif 'saveexec' in op:
                    self.defs = R(ops[0]) + [('x', 'exec')]; self.uses = sum((R(o) for o in ops[1:]), []) + [('x', 'exec')]
                elif op.startswith('s_getreg') or op == 's_getpc_b64':
                    self.defs = R(ops[0])
                else:
                    self.defs = R(ops[0]); self.uses = sum((R(o) for o in ops[1:]), [])
                    if op in ('s_addk_i32', 's_mulk_i32'):
                        self.uses += R(ops[0])
        else:
            raise ValueError('unknown instruction ' + text)

    def is_real(self):
        return self.kind not in ('label', 'pseudo', 'directive')


class Prog:
    def __init__(self):
        self.ins = []
    def I(self, text, tag=None):
        for line in text.split('\n'):
            line = line.strip()
            if line:
                self.ins.append(Ins(line, tag))
    def L(self, name):
        self.ins.append(Ins(name + ':'))
    def C(self, text):
        self.ins.append(Ins('; ' + text))
    def waitvm(self, tag):
        self.ins.append(Ins('@waitvm ' + tag))
    def waitds(self, tag):
        self.ins.append(Ins('@waitds ' + tag))
    def reset(self, vm='drained', ds='drained'):
        self.ins.append(Ins('@reset'))
    def keep(self):
        self.ins.append(Ins('@keep'))
    def extend(self, other):
        self.ins.extend(other.ins)


def insert_waits(ins):
    out = []
    vm = []
    ds = []
    smem = set()
    keep = False
    def wait(vmn=None, lgn=None):
        parts = []
        if vmn is not None:
            parts.append('vmcnt(%d)' % min(vmn, 63))
        if lgn is not None:
            parts.append('lgkmcnt(%d)' % min(lgn, 15))
        out.append(Ins('s_waitcnt ' + ' '.join(parts)))
    for i in ins:
        if i.kind == 'directive':
            p = i.op.split()
            if p[0] == '@waitvm':
                idx = max((k for k, e in enumerate(vm) if e[1] == p[1]), default=-1)
                if idx >= 0:
                    n = len(vm) - 1 - idx
                    wait(vmn=n)
                    del vm[:len(vm) - min(n, 63)]
            elif p[0] == '@waitds':
                idx = max((k for k, e in enumerate(ds) if e[1] == p[1]), default=-1)
                if idx >= 0:
                    n = len(ds) - 1 - idx
                    wait(lgn=n)
                    del ds[:len(ds) - min(n, 15)]
            elif p[0] == '@reset':
                vm = []; ds = []; smem = set()
            elif p[0] == '@keep':
                keep = True
            continue
        if i.kind == 'label' or i.kind == 'branch':
            pend = [e for e in vm + ds if e[0]]
            if (pend or smem) and not keep:
                raise RuntimeError('register loads outstanding at %s: %s' % (i.text, pend[:3]))
            keep = False
        if not i.is_real():
            out.append(i)
            continue
        if i.op == 's_waitcnt':
            m = re.search(r'vmcnt\((\d+)\)', i.text)
            if m:
                n = int(m.group(1))
                if len(vm) > n: del vm[:len(vm) - n]
            m = re.search(r'lgkmcnt\((\d+)\)', i.text)
            if m:
                n = int(m.group(1))
                if len(ds) > n: del ds[:len(ds) - n]
                if n == 0: smem = set()
            out.append(i)
            continue
        touched = set(i.uses) | set(i.defs)
        need_vm = need_ds = None
        for k, e in enumerate(vm):
            if touched & e[0]:
                need_vm = len(vm) - 1 - k
        for k, e in enumerate(ds):
            if touched & e[0]:
                need_ds = len(ds) - 1 - k
        if smem and (touched & smem):
            need_ds = 0
        if need_ds is not None and smem:
            need_ds = 0
        if need_vm is not None or need_ds is not None:
            wait(need_vm, need_ds)
            if need_vm is not None:
                del vm[:len(vm) - min(need_vm, 63)]
            if need_ds is not None:
                del ds[:len(ds) - min(need_ds, 15)]
                if need_ds == 0: smem = set()
        if i.kind == 'vmem':
            vm.append((set(i.defs), i.tag))
            assert len(vm) <= 63 or True
        elif i.kind == 'ds':
            ds.append((set(i.defs), i.tag))
        elif i.kind == 'smem':
            smem |= set(i.defs)
        out.append(i)
    return out


def states(i):
    if i.op == 's_nop':
        return int(i.text.split()[1], 0) + 1
    return 1

def mfma_passes(op):
    if '32x32x16' in op: return 8
    if '16x16x32' in op: return 4
    raise ValueError(op)

def need_states(p, c):
    n = 0
    pd = set(p.defs)
    cu = set(c.uses); cd = set(c.defs)
    isv = lambda s: {r for r in s if r[0] in 'va'}
    iss = lambda s: {r for r in s if r[0] == 's' or r == ('x', 'vcc')}
    if p.kind == 'valu':
        vw = isv(pd)
        if c.kind == 'mfma' and vw & cu: n = max(n, 2)
        if c.kind == 'valu':
            if c.op.startswith('v_permlane') and vw & cu: n = max(n, 2)
            if c.dpp and vw & cu: n = max(n, 2)
            if (c.op.startswith('v_readlane') or c.op.startswith('v_readfirstlane')) and vw & cu: n = max(n, 1)
            if p.op.replace('_e32', '').replace('_e64', '') in TRANS and vw & cu: n = max(n, 1)
            if iss(pd) & cu: n = max(n, 2)
            if ('op_sel' in (p.mods or '') and not p.op.startswith('v_pk')) and vw & (cu | cd): n = max(n, 1)
        if c.kind == 'vmem' and iss(pd) & cu: n = max(n, 5)
        if c.kind in ('smem',) and iss(pd) & cu: n = max(n, 5)
        if c.kind in ('salu',) and iss(pd) & cu: n = max(n, 1)
        if ('x', 'exec') in pd and c.kind in ('valu', 'mfma'): n = max(n, 5)
        if p.op.startswith('v_dot2'):
            if (vw & (cu | cd)):
                ops = c.text.split(None, 1)[1]
                toks = split_ops(ops)
                same_c_only = (c.op == p.op and len(toks) >= 4 and not (vw & set(regs_of(toks[1]) + regs_of(toks[2]))))
                if not same_c_only: n = max(n, 3)
    if p.kind == 'salu':
        if ('x', 'm0') in pd and c.kind == 'vmem' and ('x', 'm0') in cu: n = max(n, 1)
    if p.kind == 'mfma':
        ps = mfma_passes(p.op)
        big = {4: 8, 8: 12}[ps]
        D = pd
        if c.kind == 'mfma':
            if D & set(c.srcAB): n = max(n, big)
            cc = set(c.srcC)
            if D & cc:
                if not (cc == D and mfma_passes(c.op) == ps):
                    n = max(n, {4: 6, 8: 10}[ps])
            elif D & cd:
                n = max(n, big)
        elif c.kind in ('valu', 'vmem', 'ds'):
            if D & (cu | cd): n = max(n, big)
        if c.kind == 'valu' and set(p.srcC) & cd: n = max(n, {4: 3, 8: 7}[ps])
    if p.wide_store_data:
        w = set(p.wide_store_data)
        if c.kind == 'valu' and w & cd: n = max(n, 2)
        elif c.kind in ('ds', 'vmem', 'mfma') and w & cd: n = max(n, 1)
    return n


def insert_nops(ins):
    out = []
    WIN = 14
    for c in ins:
        if c.is_real():
            dist = 0
            need = 0
            k = len(out) - 1
            while k >= 0 and dist < WIN:
                p = out[k]
                if p.is_real():
                    r = need_states(p, c)
                    if r > dist:
                        need = max(need, r - dist)
                    dist += states(p)
                k -= 1
            while need > 0:
                m = min(need, 16)
                out.append(Ins('s_nop %d' % (m - 1)))
                need -= m
        out.append(c)
    return out


def check_backedges(ins):
    labels = {i.op: k for k, i in enumerate(ins) if i.kind == 'label'}
    probs = []
    for k, b in enumerate(ins):
        if b.kind == 'branch':
            tgt = b.text.split()[-1]
            if tgt in labels:
                t = labels[tgt]
                tail = [x for x in ins[max(0, k - 30):k + 1] if x.is_real()][-14:]
                head = [x for x in ins[t:t + 40] if x.is_real()][:14]
                for ci, c in enumerate(head):
                    dist = sum(states(x) for x in head[:ci])
                    for p in reversed(tail):
                        r = need_states(p, c)
                        if r > dist:
                            probs.append('%s -> %s needs %d has %d (edge %s)' % (p.text, c.text, r, dist, tgt))
                        dist += states(p)
    return probs


def finish(prog):
    ins = insert_waits(prog.ins)
    ins = insert_nops(ins)
    probs = check_backedges(ins)
    if probs:
        raise RuntimeError('hazards on branch edges:\n' + '\n'.join(probs))
    lines = []
    for i in ins:
        if i.kind == 'label':
            lines.append(i.text)
        else:
            lines.append('    ' + i.text)
    return '\n'.join(lines), ins


def v(b, n=1):
    return 'v%d' % b if n == 1 else 'v[%d:%d]' % (b, b + n - 1)
def a(b, n=1):
    return 'a%d' % b if n == 1 else 'a[%d:%d]' % (b, b + n - 1)
def s(b, n=1):
    return 's%d' % b if n == 1 else 's[%d:%d]' % (b, b + n - 1)
```

```python
from asmlib import *

S, D, F = 2048, 448, 1792
KNAME = 'sequential_preLN__ssm_conv_h3__glu_gated_glu__prompt'
NWG = 224

WS_EPOCH = 0
WS_FLAGS = 0x1000
WS_STATS = 0x40000
WS_STAMP = 0x50000
WS_KVT = 0x100000
WS_XT = 0x300000
WS_HT = 0x500000
WS_HH = 0x700000
WS_END = 0xE00000

S_WG = 2
P_Q, P_K, P_V, P_SH, P_FK, P_SD, P_BX, P_WG = 4, 6, 8, 10, 12, 14, 16, 18
P_WU, P_WD, P_OUT, P_DBG, P_WS = 20, 22, 24, 26, 28
R_Q, R_K, R_V, R_WS, R_WG, R_WU, R_WD, R_OUT, R_T0, R_T1 = 32, 36, 40, 44, 48, 52, 56, 60, 64, 68
OOB = 0x80000000

def srd(p, r, ptr, nbytes):
    p.I('s_mov_b32 %s, %s' % (s(r), s(ptr)))
    p.I('s_and_b32 %s, %s, 0xffff' % (s(r + 1), s(ptr + 1)))
    p.I('s_mov_b32 %s, 0x%x' % (s(r + 2), nbytes))
    p.I('s_mov_b32 %s, 0x20000' % s(r + 3))

def load_kernargs(p):
    p.I('s_load_dwordx16 s[4:19], s[0:1], 0')
    p.I('s_load_dwordx8 s[20:27], s[0:1], 64')
    p.I('s_load_dwordx2 s[28:29], s[0:1], 96')

HEADER = '''; Kernarg layout (104 bytes, ptrs only, base s[0:1]): q k v shift_k ssm_k ssm_D B_x w_gate w_up w_down out debug ws
%s
.amdgcn_target "amdgcn-amd-amdhsa--gfx950"
.text
'''

def kernel_text(name, body, vgpr=512, accum=256, sgpr=102):
    t = '.globl %s\n.p2align 8\n.type %s,@function\n%s:\n%s\n' % (name, name, name, body)
    kd = '''.amdhsa_kernel %s
  .amdhsa_next_free_vgpr %d
  .amdhsa_next_free_sgpr %d
  .amdhsa_accum_offset %d
  .amdhsa_group_segment_fixed_size 0
  .amdhsa_kernarg_size 104
  .amdhsa_user_sgpr_count 2
  .amdhsa_user_sgpr_kernarg_segment_ptr 1
  .amdhsa_system_sgpr_workgroup_id_x 1
  .amdhsa_float_denorm_mode_32 3
.end_amdhsa_kernel
''' % (name, vgpr, sgpr, accum)
    return t, kd

class Alloc:
    def __init__(self, lo, hi):
        self.n = lo; self.hi = hi
    def get(self, k=1, align=1):
        if k >= 2 and align < 2: align = 2
        self.n = (self.n + align - 1) // align * align
        b = self.n; self.n += k
        assert self.n <= self.hi, 'out of registers'
        return b
```

```python
from common import *

def emit_p0(p, va, sc='sc1'):
    sRB, sC, sT, sT2 = 72, 73, 74, 75
    sK5, sKV0, sKV1, sX0, sX1, sMASK, sSEL0, sSEL1 = 76, 77, 78, 79, 80, 81, 82, 83
    p.C('---- P0: transpose kv / x, LN1 stats ----')
    p.I('s_and_b32 %s, s2, 31' % s(sRB))
    p.I('s_lshr_b32 %s, s2, 5' % s(sC))
    srd(p, R_T0, P_SH, D * 4 * 2)
    lane = va.get(); w = va.get(); cpl = va.get(); gq = va.get()
    vpos = va.get(); vneg = va.get(); vsh = va.get(); vst = va.get(); t0 = va.get(); t1 = va.get()
    p.I('v_and_b32 %s, 63, v0' % v(lane))
    p.I('v_lshrrev_b32 %s, 6, v0' % v(w))
    p.I('v_and_b32 %s, 7, %s' % (v(cpl), v(lane)))
    p.I('v_lshl_add_u32 %s, %s, 3, %s' % (v(cpl), v(w), v(cpl)))
    p.I('v_lshrrev_b32 %s, 3, %s' % (v(gq), v(lane)))
    p.I('s_lshl_b32 %s, %s, 6' % (s(sT), s(sRB)))
    p.I('v_lshl_add_u32 %s, %s, 3, %s' % (v(t0), v(gq), s(sT)))
    p.I('s_movk_i32 %s, 896' % s(sT2))
    p.I('v_mul_u32_u24 %s, %s, %s' % (v(vpos), s(sT2), v(t0)))
    p.I('s_lshl_b32 %s, %s, 7' % (s(sT), s(sC)))
    p.I('v_lshl_add_u32 %s, %s, 2, %s' % (v(t1), v(cpl), s(sT)))
    p.I('v_add_u32 %s, %s, %s' % (v(vpos), v(vpos), v(t1)))
    p.I('v_subrev_u32 %s, 2688, %s' % (v(vneg), v(vpos)))
    p.I('s_movk_i32 %s, 4480' % s(sK5))
    kd = va.get(12); vd = va.get(8); xd = va.get(8); shw = va.get(4, 4)
    for i in range(3):
        p.I('buffer_load_dword %s, %s, %s, 0 offen offset:%d' % (v(kd + i), v(vneg), s(R_K, 4), 896 * i))
    def rowload(dst, srdr):
        for r in range(8):
            if r < 5:
                p.I('buffer_load_dword %s, %s, %s, 0 offen offset:%d' % (v(dst + r), v(vpos), s(srdr, 4), 896 * r))
            else:
                p.I('buffer_load_dword %s, %s, %s, %s offen offset:%d' % (v(dst + r), v(vpos), s(srdr, 4), s(sK5), 896 * (r - 5)))
    rowload(kd + 3, R_K)
    p.I('s_lshl_b32 %s, %s, 9' % (s(sT), s(sC)))
    p.I('v_lshl_add_u32 %s, %s, 4, %s' % (v(vsh), v(cpl), s(sT)))
    p.I('buffer_load_dwordx4 %s, %s, %s, 0 offen' % (v(shw, 4), v(vsh), s(R_T0, 4)))
    rowload(vd, R_V)
    rowload(xd, R_Q)
    srow = va.get(); l16 = va.get(); vs = va.get(); sd = va.get(16, 4)
    p.I('v_lshrrev_b32 %s, 4, v0' % v(srow))
    p.I('s_lshl_b32 %s, %s, 6' % (s(sT), s(sRB)))
    p.I('s_lshl_b32 %s, %s, 4' % (s(sT2), s(sC)))
    p.I('s_add_u32 %s, %s, %s' % (s(sT), s(sT), s(sT2)))
    p.I('v_add_u32 %s, %s, %s' % (v(srow), s(sT), v(srow)))
    p.I('v_and_b32 %s, 15, v0' % v(l16))
    p.I('s_movk_i32 %s, 896' % s(sT2))
    p.I('v_mul_u32_u24 %s, %s, %s' % (v(vs), s(sT2), v(srow)))
    p.I('v_lshl_add_u32 %s, %s, 6, %s' % (v(vs), v(l16), v(vs)))
    p.I('s_cmp_lt_u32 %s, 4' % s(sC))
    p.I('s_cselect_b32 %s, 14, 0' % s(sT))
    p.I('v_cmp_gt_u32 vcc, %s, %s' % (s(sT), v(l16)))
    p.I('v_mov_b32 %s, 0x%x' % (v(t0), OOB))
    p.I('v_cndmask_b32 %s, %s, %s, vcc' % (v(vs), v(t0), v(vs)))
    for i in range(4):
        p.I('buffer_load_dwordx4 %s, %s, %s, 0 offen offset:%d' % (v(sd + 4 * i, 4), v(vs), s(R_Q, 4), 16 * i))
    p.I('s_lshl_b32 %s, %s, 18' % (s(sT), s(sC)))
    p.I('s_lshl_b32 %s, %s, 7' % (s(sT2), s(sRB)))
    p.I('s_add_u32 %s, %s, %s' % (s(sT), s(sT), s(sT2)))
    p.I('v_lshlrev_b32 %s, 13, %s' % (v(vst), v(cpl)))
    p.I('v_lshl_add_u32 %s, %s, 4, %s' % (v(vst), v(gq), v(vst)))
    p.I('v_add_u32 %s, %s, %s' % (v(vst), s(sT), v(vst)))
    p.I('s_mov_b32 %s, 0x%x' % (s(sKV0), WS_KVT))
    p.I('s_mov_b32 %s, 0x%x' % (s(sKV1), WS_KVT + 4096))
    p.I('s_mov_b32 %s, 0x%x' % (s(sX0), WS_XT))
    p.I('s_mov_b32 %s, 0x%x' % (s(sX1), WS_XT + 4096))
    p.I('s_mov_b32 %s, 0xffff0000' % s(sMASK))
    p.I('s_mov_b32 %s, 0x05040100' % s(sSEL0))
    p.I('s_mov_b32 %s, 0x07060302' % s(sSEL1))
    W = va.get(8, 2)
    p.I('v_lshlrev_b32 %s, 16, %s' % (v(W + 0), v(shw + 0)))
    p.I('v_lshlrev_b32 %s, 16, %s' % (v(W + 1), v(shw + 2)))
    p.I('v_and_b32 %s, %s, %s' % (v(W + 2), s(sMASK), v(shw + 0)))
    p.I('v_and_b32 %s, %s, %s' % (v(W + 3), s(sMASK), v(shw + 2)))
    p.I('v_lshlrev_b32 %s, 16, %s' % (v(W + 4), v(shw + 1)))
    p.I('v_lshlrev_b32 %s, 16, %s' % (v(W + 5), v(shw + 3)))
    p.I('v_and_b32 %s, %s, %s' % (v(W + 6), s(sMASK), v(shw + 1)))
    p.I('v_and_b32 %s, %s, %s' % (v(W + 7), s(sMASK), v(shw + 3)))
    K = va.get(22, 2)
    for i in range(11):
        p.I('v_lshlrev_b32 %s, 16, %s' % (v(K + 2 * i), v(kd + i)))
        p.I('v_and_b32 %s, %s, %s' % (v(K + 2 * i + 1), s(sMASK), v(kd + i)))
    A = va.get(16, 2)
    for r in range(8):
        p.I('v_pk_mul_f32 %s, %s, %s' % (v(A + 2 * r, 2), v(K + 2 * (r + 3), 2), v(W, 2)))
    for j in range(1, 4):
        for r in range(8):
            p.I('v_pk_fma_f32 %s, %s, %s, %s' % (v(A + 2 * r, 2), v(K + 2 * (r + 3 - j), 2), v(W + 2 * j, 2), v(A + 2 * r, 2)))
    V = K
    for r in range(8):
        p.I('v_lshlrev_b32 %s, 16, %s' % (v(V + 2 * r), v(vd + r)))
        p.I('v_and_b32 %s, %s, %s' % (v(V + 2 * r + 1), s(sMASK), v(vd + r)))
    for r in range(8):
        p.I('v_pk_mul_f32 %s, %s, %s' % (v(A + 2 * r, 2), v(A + 2 * r, 2), v(V + 2 * r, 2)))
    o = va.get(16, 4)
    for ch in range(2):
        for i in range(4):
            p.I('v_cvt_pk_bf16_f32 %s, %s, %s' % (v(o + 4 * ch + i), v(A + 2 * (7 - 2 * i) + ch), v(A + 2 * (6 - 2 * i) + ch)))
    p.I('buffer_store_dwordx4 %s, %s, %s, %s offen %s' % (v(o, 4), v(vst), s(R_WS, 4), s(sKV0), sc))
    p.I('buffer_store_dwordx4 %s, %s, %s, %s offen %s' % (v(o + 4, 4), v(vst), s(R_WS, 4), s(sKV1), sc))
    for ch in range(2):
        for i in range(4):
            p.I('v_perm_b32 %s, %s, %s, %s' % (v(o + 8 + 4 * ch + i), v(xd + 2 * i + 1), v(xd + 2 * i), s(sSEL0 + ch)))
    p.I('buffer_store_dwordx4 %s, %s, %s, %s offen %s' % (v(o + 8, 4), v(vst), s(R_WS, 4), s(sX0), sc))
    p.I('buffer_store_dwordx4 %s, %s, %s, %s offen %s' % (v(o + 12, 4), v(vst), s(R_WS, 4), s(sX1), sc))
    sm = va.get(2, 2); sq = sm + 1; ones = va.get(); r_ = va.get(2, 2); vsa = va.get()
    p.I('v_mov_b32 %s, 0x3f803f80' % v(ones))
    p.I('v_mov_b32 %s, 0' % v(sm))
    p.I('v_mov_b32 %s, 0' % v(sq))
    for i in range(16):
        p.I('v_dot2_f32_bf16 %s, %s, %s, %s' % (v(sm), v(sd + i), v(ones), v(sm)))
        p.I('v_dot2_f32_bf16 %s, %s, %s, %s' % (v(sq), v(sd + i), v(sd + i), v(sq)))
    p.I('v_lshlrev_b32 %s, 3, %s' % (v(vsa), v(srow)))
    p.I('v_add_u32 %s, 0x%x, %s' % (v(vsa), WS_STATS, v(vsa)))
    p.I('s_cmp_lt_u32 %s, 4' % s(sC))
    p.I('s_cselect_b32 %s, 1, 0' % s(sT))
    p.I('v_cmp_gt_u32 vcc, %s, %s' % (s(sT), v(l16)))
    p.I('v_mov_b32 %s, 0x%x' % (v(t0), OOB))
    p.I('v_cndmask_b32 %s, %s, %s, vcc' % (v(vsa), v(t0), v(vsa)))
    for rot in (8, 4, 2, 1):
        p.I('v_add_f32_dpp %s, %s, %s row_ror:%d row_mask:0xf bank_mask:0xf' % (v(sm), v(sm), v(sm), rot))
        p.I('v_add_f32_dpp %s, %s, %s row_ror:%d row_mask:0xf bank_mask:0xf' % (v(sq), v(sq), v(sq), rot))
    p.I('v_mul_f32 %s, 0x%08x, %s' % (v(sm), f32(1.0 / D), v(sm)))
    p.I('v_mul_f32 %s, 0x%08x, %s' % (v(sq), f32(1.0 / D), v(sq)))
    p.I('v_fma_f32 %s, -%s, %s, %s' % (v(sq), v(sm), v(sm), v(sq)))
    p.I('v_max_f32 %s, 0, %s' % (v(sq), v(sq)))
    p.I('v_add_f32 %s, 0x%08x, %s' % (v(sq), f32(1e-5), v(sq)))
    p.I('v_rsq_f32 %s, %s' % (v(r_), v(sq)))
    p.I('v_mul_f32 %s, -%s, %s' % (v(r_ + 1), v(sm), v(r_)) if False else 'v_mul_f32_e64 %s, -%s, %s' % (v(r_ + 1), v(sm), v(r_)))
    p.I('buffer_store_dwordx2 %s, %s, %s, 0 offen %s' % (v(r_, 2), v(vsa), s(R_WS, 4), sc))

import struct
def f32(x):
    return struct.unpack('<I', struct.pack('<f', x))[0]
```

```python
from common import *

FCH = 2096 * 16
LF = 0
LK = 2 * FCH
KCH = 96 * 80
LE = LK + 2 * KCH
P1_LDS_END = LE + 4 * 4096
BQ_TABLE = 0x71352460

def emit_filter_prep(p, va):
    sT, sT2 = 72, 73
    p.C('---- filter copies ----')
    for ch, R in ((0, R_T0), (1, R_T1)):
        p.I('s_lshl_b32 %s, s2, 13' % s(sT))
        if ch: p.I('s_add_u32 %s, %s, 4096' % (s(sT), s(sT)))
        p.I('s_add_u32 %s, %s, %s' % (s(R), s(P_FK), s(sT)))
        p.I('s_addc_u32 %s, %s, 0' % (s(R + 1), s(P_FK + 1)))
        p.I('s_and_b32 %s, %s, 0xffff' % (s(R + 1), s(R + 1)))
        p.I('s_mov_b32 %s, 4096' % s(R + 2))
        p.I('s_mov_b32 %s, 0x20000' % s(R + 3))
    vo = va.get(); vo2 = va.get(); z = va.get(4, 4); za = va.get(); t = va.get()
    p.I('v_lshlrev_b32 %s, 4, v0' % v(vo2))
    p.I('v_subrev_u32 %s, 16, %s' % (v(vo), v(vo2)))
    w = [va.get(8, 4), va.get(8, 4)]
    for ch, R in ((0, R_T0), (1, R_T1)):
        p.I('buffer_load_dwordx4 %s, %s, %s, 0 offen' % (v(w[ch], 4), v(vo), s(R, 4)))
        p.I('buffer_load_dwordx4 %s, %s, %s, 0 offen' % (v(w[ch] + 4, 4), v(vo2), s(R, 4)))
    for i in range(4): p.I('v_mov_b32 %s, 0' % v(z + i))
    p.I('v_and_b32 %s, 31, v0' % v(za))
    p.I('v_lshrrev_b32 %s, 2, %s' % (v(za), v(za)))
    p.I('v_mul_u32_u24 %s, 262, %s' % (v(za), v(za)))
    p.I('v_and_b32 %s, 3, v0' % v(t))
    p.I('v_add_u32 %s, %s, %s' % (v(za), v(za), v(t)))
    p.I('v_bfe_u32 %s, v0, 5, 1' % v(t))
    p.I('v_mul_u32_u24 %s, %d, %s' % (v(t), FCH // 16, v(t)))
    p.I('v_add_lshl_u32 %s, %s, %s, 4' % (v(za), v(za), v(t)))
    p.I('ds_write_b128 %s, %s offset:%d' % (v(za), v(z, 4), LF))
    p.I('v_bfe_u32 %s, v0, 2, 5' % v(za))
    p.I('v_mul_u32_u24 %s, 80, %s' % (v(za), v(za)))
    p.I('v_and_b32 %s, 3, v0' % v(t))
    p.I('v_lshl_add_u32 %s, %s, 4, %s' % (v(za), v(t), v(za)))
    p.I('v_lshrrev_b32 %s, 7, v0' % v(t))
    p.I('v_mul_u32_u24 %s, %d, %s' % (v(t), KCH, v(t)))
    p.I('v_add_u32 %s, %s, %s' % (v(za), v(za), v(t)))
    p.I('v_add_u32 %s, %d, %s' % (v(za), LK, v(za)))
    p.I('ds_write_b128 %s, %s' % (v(za), v(z, 4)))
    w1 = va.get(6, 2); sA = va.get(6, 2); sB = va.get(6, 2)
    for ch in range(2):
        W = w[ch]
        off = lambda sg: LF + ch * FCH + (262 * sg + 4) * 16
        p.I('ds_write_b128 %s, %s offset:%d' % (v(vo2), v(W + 4, 4), off(0)))
        p.I('ds_write_b128 %s, %s offset:%d' % (v(vo2), v(W + 2, 4), off(4)))
        for i in range(6): p.I('v_mov_b32 %s, %s' % (v(w1 + i), v(W + 1 + i)))
        p.I('ds_write_b128 %s, %s offset:%d' % (v(vo2), v(w1, 4), off(2)))
        p.I('ds_write_b128 %s, %s offset:%d' % (v(vo2), v(w1 + 2, 4), off(6)))
        for i in range(6): p.I('v_alignbit_b32 %s, %s, %s, 16' % (v(sA + i), v(W + i + 1), v(W + i)))
        p.I('ds_write_b128 %s, %s offset:%d' % (v(vo2), v(sA, 4), off(1)))
        p.I('ds_write_b128 %s, %s offset:%d' % (v(vo2), v(sA + 2, 4), off(5)))
        for i in range(6): p.I('v_alignbit_b32 %s, %s, %s, 16' % (v(sB + i), v(W + i + 2), v(W + i + 1)))
        p.I('ds_write_b128 %s, %s offset:%d' % (v(vo2), v(sB, 4), off(3)))
        p.I('ds_write_b128 %s, %s offset:%d' % (v(vo2), v(sB + 2, 4), off(7)))


class P1Regs:
    pass

def emit_p1_addr(p, va):
    R = P1Regs()
    sT, sT2, sCH, sKS = 72, 73, 84, 85
    R.sCH, R.sKS = sCH, sKS
    p.C('---- P1 addresses ----')
    R.aA = va.get(); R.aB = va.get(); R.gX = va.get(); R.gY = va.get(); R.lX = va.get(); R.lY = va.get()
    R.gS = va.get(); R.gS2 = va.get(); R.gH = va.get(); R.ex = va.get(); R.exr = va.get(); R.gD = va.get()
    l = va.get(); t = va.get(); t2 = va.get(); b = va.get(); n = va.get(); h = va.get()
    p.I('v_readfirstlane_b32 %s, v0' % s(sT))
    p.I('s_lshr_b32 %s, %s, 7' % (s(sCH), s(sT)))
    p.I('s_bfe_u32 %s, %s, 0x10006' % (s(sKS), s(sT)))
    p.I('v_and_b32 %s, 63, v0' % v(l))
    p.I('v_and_b32 %s, 31, v0' % v(n))
    p.I('v_bfe_u32 %s, v0, 5, 1' % v(h))
    p.I('v_lshrrev_b32 %s, 2, %s' % (v(t), v(n)))
    p.I('v_lshlrev_b32 %s, 2, %s' % (v(t), v(t)))
    p.I('s_mov_b32 %s, 0x%x' % (s(sT), BQ_TABLE))
    p.I('v_lshrrev_b32 %s, %s, %s' % (v(b), v(t), s(sT)) if False else 'v_lshrrev_b32_e64 %s, %s, %s' % (v(b), v(t), s(sT)))
    p.I('v_and_b32 %s, 7, %s' % (v(b), v(b)))
    p.I('v_and_b32 %s, 3, %s' % (v(t), v(n)))
    p.I('v_lshl_add_u32 %s, %s, 2, %s' % (v(b), v(b), v(t)))
    p.I('v_add_u32 %s, 1, %s' % (v(b), v(b)))
    p.I('v_and_b32 %s, 7, %s' % (v(t), v(b)))
    p.I('v_lshrrev_b32 %s, 3, %s' % (v(t2), v(b)))
    p.I('v_mul_u32_u24 %s, 262, %s' % (v(R.aA), v(t)))
    p.I('v_min_u32 %s, 1, %s' % (v(t), v(t)))
    p.I('v_add3_u32 %s, %s, %s, %s' % (v(R.aA), v(R.aA), v(t), v(t2)))
    p.I('v_sub_u32 %s, %s, %s' % (v(R.aA), v(R.aA), v(h)))
    p.I('s_mul_i32 %s, %s, %d' % (s(sT), s(sCH), FCH // 16))
    p.I('s_lshl_b32 %s, %s, 1' % (s(sT2), s(sKS)))
    p.I('s_sub_u32 %s, %s, %s' % (s(sT), s(sT), s(sT2)))
    p.I('s_add_u32 %s, %s, 3' % (s(sT), s(sT)))
    p.I('v_add_lshl_u32 %s, %s, %s, 4' % (v(R.aA), s(sT), v(R.aA)) if False else 'v_add_u32 %s, %s, %s' % (v(R.aA), s(sT), v(R.aA)))
    p.I('v_lshlrev_b32 %s, 4, %s' % (v(R.aA), v(R.aA)))
    p.I('s_mul_i32 %s, %s, %d' % (s(sT), s(sCH), KCH))
    p.I('s_lshl_b32 %s, %s, 5' % (s(sT2), s(sKS)))
    p.I('s_add_u32 %s, %s, %s' % (s(sT), s(sT), s(sT2)))
    p.I('s_add_u32 %s, %s, %d' % (s(sT), s(sT), LK + 80))
    p.I('v_mul_u32_u24 %s, 80, %s' % (v(R.aB), v(n)))
    p.I('v_lshl_add_u32 %s, %s, 4, %s' % (v(R.aB), v(h), v(R.aB)))
    p.I('v_add_u32 %s, %s, %s' % (v(R.aB), s(sT), v(R.aB)))
    uX = b; uY = t2
    p.I('s_lshl_b32 %s, %s, 5' % (s(sT), s(sKS)))
    p.I('v_add_u32 %s, %s, %s' % (v(t), s(sT), v(n)))
    A_ = n
    p.I('v_mov_b32 %s, %s' % (v(A_), v(t)))
    p.I('v_mul_u32_u24 %s, 3, %s' % (v(uX), v(h)))
    p.I('v_sub_u32 %s, 2, %s' % (v(uY), v(h)))
    p.I('s_mul_i32 %s, %s, %d' % (s(sT), s(sCH), KCH))
    p.I('s_add_u32 %s, %s, %d' % (s(sT), s(sT), LK + 32 * 80))
    p.I('v_mul_u32_u24 %s, 80, %s' % (v(t), v(A_)))
    p.I('v_add_u32 %s, %s, %s' % (v(t), s(sT), v(t)))
    p.I('v_lshl_add_u32 %s, %s, 4, %s' % (v(R.lX), v(uX), v(t)))
    p.I('v_lshl_add_u32 %s, %s, 4, %s' % (v(R.lY), v(uY), v(t)))
    p.I('s_lshl_b32 %s, s2, 13' % s(sT))
    p.I('s_lshl_b32 %s, %s, 12' % (s(sT2), s(sCH)))
    p.I('s_add_u32 %s, %s, %s' % (s(sT), s(sT), s(sT2)))
    p.I('v_lshlrev_b32 %s, 6, %s' % (v(t), v(A_)))
    p.I('v_add_u32 %s, %s, %s' % (v(t), s(sT), v(t)))
    p.I('v_lshl_add_u32 %s, %s, 4, %s' % (v(R.gX), v(uX), v(t)))
    p.I('v_lshl_add_u32 %s, %s, 4, %s' % (v(R.gY), v(uY), v(t)))
    p.I('v_lshlrev_b32 %s, 8, %s' % (v(t), v(A_)))
    p.I('v_add_u32 %s, 0x%x, %s' % (v(t), WS_STATS, v(t)))
    p.I('v_lshl_add_u32 %s, %s, 6, %s' % (v(R.gS), v(uX), v(t)))
    p.I('v_lshl_add_u32 %s, %s, 6, %s' % (v(R.gS2), v(uY), v(t)))
    p.I('s_lshl_b32 %s, %s, 11' % (s(sT2), s(sKS)))
    p.I('s_add_u32 %s, %s, %s' % (s(sT), s(sT), s(sT2)))
    p.I('s_add_u32 %s, %s, 0x%x' % (s(sT), s(sT), WS_HT))
    p.I('v_and_b32 %s, 15, %s' % (v(t), v(l)))
    p.I('v_lshlrev_b32 %s, 6, %s' % (v(R.gH), v(t)))
    p.I('v_lshrrev_b32 %s, 4, %s' % (v(t), v(l)))
    p.I('v_lshlrev_b32 %s, 2, %s' % (v(t), v(t)))
    p.I('s_movk_i32 %s, 0x1320' % s(sT2))
    p.I('v_lshrrev_b32_e64 %s, %s, %s' % (v(t), v(t), s(sT2)))
    p.I('v_and_b32 %s, 3, %s' % (v(t), v(t)))
    p.I('v_lshl_add_u32 %s, %s, 4, %s' % (v(R.gH), v(t), v(R.gH)))
    p.I('v_add_u32 %s, %s, %s' % (v(R.gH), s(sT), v(R.gH)))
    p.I('v_lshrrev_b32 %s, 6, v0' % v(t))
    p.I('v_lshlrev_b32 %s, 12, %s' % (v(R.ex), v(t)))
    p.I('v_lshl_add_u32 %s, %s, 4, %s' % (v(R.ex), v(l), v(R.ex)))
    p.I('v_add_u32 %s, %d, %s' % (v(R.ex), LE, v(R.ex)))
    p.I('v_xor_b32 %s, 4096, %s' % (v(R.exr), v(R.ex)))
    p.I('s_lshl_b32 %s, s2, 2' % s(sT))
    p.I('s_lshl_b32 %s, %s, 1' % (s(sT2), s(sCH)))
    p.I('s_add_u32 %s, %s, %s' % (s(sT), s(sT), s(sT2)))
    p.I('v_mov_b32 %s, %s' % (v(R.gD), s(sT)))
    return R

def emit_p1_main(p, va, R, sc='sc1', lab=''):
    sT, sKV, sX = 72, 73, 74
    p.C('---- P1: loads ----')
    srd(p, R_T0, P_SD, D * 2)
    kX = va.get(4, 4); kY = va.get(4, 4); xX = va.get(4, 4); xY = va.get(4, 4); st = va.get(32, 4); dv = va.get()
    p.I('s_mov_b32 %s, 0x%x' % (s(sKV), WS_KVT))
    p.I('s_mov_b32 %s, 0x%x' % (s(sX), WS_XT))
    p.I('buffer_load_dwordx4 %s, %s, %s, %s offen %s' % (v(kX, 4), v(R.gX), s(R_WS, 4), s(sKV), sc))
    p.I('buffer_load_dwordx4 %s, %s, %s, %s offen %s' % (v(kY, 4), v(R.gY), s(R_WS, 4), s(sKV), sc))
    p.I('buffer_load_dwordx4 %s, %s, %s, %s offen %s' % (v(xX, 4), v(R.gX), s(R_WS, 4), s(sX), sc))
    p.I('buffer_load_dwordx4 %s, %s, %s, %s offen %s' % (v(xY, 4), v(R.gY), s(R_WS, 4), s(sX), sc))
    for i in range(4):
        p.I('buffer_load_dwordx4 %s, %s, %s, 0 offen offset:%d %s' % (v(st + 4 * i, 4), v(R.gS), s(R_WS, 4), 16 * i, sc))
    for i in range(4):
        p.I('buffer_load_dwordx4 %s, %s, %s, 0 offen offset:%d %s' % (v(st + 16 + 4 * i, 4), v(R.gS2), s(R_WS, 4), 16 * i, sc))
    p.I('buffer_load_ushort %s, %s, %s, 0 offen' % (v(dv), v(R.gD), s(R_T0, 4)))
    p.I('ds_write_b128 %s, %s' % (v(R.lX), v(kX, 4)))
    p.I('ds_write_b128 %s, %s' % (v(R.lY), v(kY, 4)))
    p.I('s_waitcnt lgkmcnt(0)')
    p.I('s_barrier')
    acc = [va.get(16, 4), va.get(16, 4)]
    NS = 4
    fr = va.get(16 * NS, 4)
    def reads(d):
        b = fr + 16 * (d % NS)
        return ['ds_read_b128 %s, %s offset:%d' % (v(b, 4), v(R.aA), 64 * d),
                'ds_read_b128 %s, %s offset:%d' % (v(b + 4, 4), v(R.aB), (31 - d) * 80),
                'ds_read_b128 %s, %s offset:%d' % (v(b + 8, 4), v(R.aB), (31 - d) * 80 + 2560),
                'ds_read_b128 %s, %s offset:%d' % (v(b + 12, 4), v(R.aA), 64 * d + 2048)]
    xf = va.get(16, 2); a1 = va.get(16, 2); kf = va.get(16, 2)
    fill = []
    fill.append('v_lshlrev_b32 %s, 16, %s' % (v(dv), v(dv)))
    for u, (xs, ksrc) in enumerate(((xX, kX), (xY, kY))):
        for i in range(4):
            fill.append('v_lshlrev_b32 %s, 16, %s' % (v(xf + 8 * u + 2 * i), v(xs + i)))
            fill.append('v_and_b32 %s, 0xffff0000, %s' % (v(xf + 8 * u + 2 * i + 1), v(xs + i)))
        for i in range(4):
            fill.append('v_lshlrev_b32 %s, 16, %s' % (v(kf + 8 * u + 7 - 2 * i), v(ksrc + i)))
            fill.append('v_and_b32 %s, 0xffff0000, %s' % (v(kf + 8 * u + 6 - 2 * i), v(ksrc + i)))
    for e in range(16):
        fill.append('v_mul_f32 %s, %s, %s' % (v(kf + e), v(dv), v(kf + e)))
    for e in range(16):
        fill.append('v_fma_f32 %s, %s, %s, %s' % (v(a1 + e), v(xf + e), v(st + 2 * e), v(st + 2 * e + 1)))
    for e in range(16):
        fill.append('v_fma_f32 %s, %s, %s, %s' % (v(xf + e), v(a1 + e), v(kf + e), v(xf + e)))
    p.C('---- P1: Toeplitz MFMA loop ----')
    PRE = NS - 1
    for d in range(PRE):
        for r in reads(d): p.I(r)
    fi = 0
    for d in range(32):
        b = fr + 16 * (d % NS)
        nxt = reads(d + PRE) if d + PRE < 32 else []
        c0 = v(acc[0], 16) if d else '0'
        c1 = v(acc[1], 16) if d else '0'
        mf = ['v_mfma_f32_32x32x16_bf16 %s, %s, %s, %s' % (v(acc[0], 16), v(b, 4), v(b + 4, 4), c0),
              'v_mfma_f32_32x32x16_bf16 %s, %s, %s, %s' % (v(acc[1], 16), v(b, 4), v(b + 8, 4), c1),
              'v_mfma_f32_32x32x16_bf16 %s, %s, %s, %s' % (v(acc[1], 16), v(b + 12, 4), v(b + 4, 4), v(acc[1], 16))]
        for k in range(3):
            p.I(mf[k])
            if k < 2:
                for r in nxt[2 * k:2 * k + 2]: p.I(r)
            if d >= 2 and fi < len(fill):
                p.I(fill[fi]); fi += 1
    while fi < len(fill):
        p.I(fill[fi]); fi += 1
    p.C('---- P1: exchange + epilogue ----')
    T = fr
    p.I('s_nop 15')
    p.I('s_cmp_eq_u32 %s, 0' % s(R.sKS))
    p.I('s_cbranch_scc0 L_p1_ks1%s' % lab)
    for variant in range(2):
        own, oth = acc[variant], acc[1 - variant]
        if variant == 1:
            p.L('L_p1_ks1%s' % lab)
        for i in range(4):
            p.I('ds_write_b128 %s, %s offset:%d' % (v(R.ex), v(oth + 4 * i, 4), 1024 * i))
        p.I('s_waitcnt lgkmcnt(0)')
        p.I('s_barrier')
        for i in range(4):
            p.I('ds_read_b128 %s, %s offset:%d' % (v(T + 4 * i, 4), v(R.exr), 1024 * i))
        for i in range(8):
            p.I('v_pk_add_f32 %s, %s, %s' % (v(T + 2 * i, 2), v(T + 2 * i, 2), v(own + 2 * i, 2)))
        if variant == 0:
            p.I('s_branch L_p1_join%s' % lab)
    p.L('L_p1_join%s' % lab)
    regX = [0, 1, 2, 3, 12, 13, 14, 15]
    hX = T + 16
    for i in range(4):
        rx = regX[2 * i]
        p.I('v_pk_fma_f32 %s, %s, %s, %s' % (v(hX + 2 * i, 2), v(a1 + 2 * i, 2), v(T + rx, 2), v(xf + 2 * i, 2)))
    for i in range(4):
        p.I('v_pk_fma_f32 %s, %s, %s, %s' % (v(hX + 8 + 2 * i, 2), v(a1 + 8 + 2 * i, 2), v(T + 4 + 2 * i, 2), v(xf + 8 + 2 * i, 2)))
    PX = T + 32; PY = T + 36
    for i in range(4):
        p.I('v_cvt_pk_bf16_f32 %s, %s, %s' % (v(PX + i), v(hX + 2 * i), v(hX + 2 * i + 1)))
    for i in range(4):
        p.I('v_cvt_pk_bf16_f32 %s, %s, %s' % (v(PY + i), v(hX + 8 + 2 * i), v(hX + 8 + 2 * i + 1)))
    for i in range(4):
        p.I('v_permlane16_swap_b32 %s, %s' % (v(PX + i), v(PY + i)))
    p.I('buffer_store_dwordx4 %s, %s, %s, 0 offen %s' % (v(PX, 4), v(R.gH), s(R_WS, 4), sc))
    p.I('buffer_store_dwordx4 %s, %s, %s, 0 offen offset:1024 %s' % (v(PY, 4), v(R.gH), s(R_WS, 4), sc))
```

```python
from common import *
from p0 import f32

HT_HALF = 448 * 128
L_HT = 0
L_STAT = 2 * HT_HALF
P2_LDS_END = L_STAT + 1024
WBUF = 16384

class R2: pass

def emit_p2_ids(p):
    sT = 72
    p.I('s_and_b32 %s, s2, 7' % s(sT))
    p.I('s_lshr_b32 s73, s2, 3')
    p.I('s_mul_i32 s74, s73, 37')
    p.I('s_lshr_b32 s74, s74, 8')
    p.I('s_mul_i32 s75, s74, 7')
    p.I('s_sub_u32 s75, s73, s75')
    p.I('s_lshr_b32 s86, %s, 1' % s(sT))
    p.I('s_lshl_b32 s86, s86, 2')
    p.I('s_add_u32 s86, s86, s74')
    p.I('s_and_b32 s87, %s, 1' % s(sT))
    p.I('s_mul_i32 s87, s87, 7')
    p.I('s_add_u32 s87, s87, s75')
    p.I('v_readfirstlane_b32 s88, v0')
    p.I('s_lshr_b32 s88, s88, 6')

def emit_w_stage(p, va, lbase, NB=4, colsum=None):
    sSO, sM, sT = 72, 73, 74
    p.C('---- stage gate/up weights into AGPRs ----')
    vg = va.get(); vu = va.get(); t = va.get(); t2 = va.get(); b0 = va.get(); b1 = va.get()
    p.I('v_and_b32 %s, 63, v0' % v(t))
    p.I('v_lshrrev_b32 %s, 4, %s' % (v(t2), v(t)))
    p.I('v_mul_u32_u24 %s, 3584, %s' % (v(vg), v(t2)))
    p.I('v_bfe_u32 %s, %s, 1, 3' % (v(vu), v(t)))
    p.I('v_xor_b32 %s, %s, %s' % (v(vu), v(vu), v(t2)))
    p.I('v_lshl_add_u32 %s, %s, 5, %s' % (v(vg), v(vu), v(vg)))
    p.I('v_and_b32 %s, 1, %s' % (v(vu), v(t)))
    p.I('v_lshl_add_u32 %s, %s, 4, %s' % (v(vg), v(vu), v(vg)))
    p.I('v_xor_b32 %s, 128, %s' % (v(vu), v(vg)))
    p.I('v_bfe_u32 %s, %s, 2, 2' % (v(t2), v(t)))
    p.I('v_bfe_u32 %s, %s, 4, 1' % (v(b1), v(t)))
    p.I('v_lshl_add_u32 %s, %s, 2, %s' % (v(b0), v(b1), v(t2)))
    p.I('v_xor_b32 %s, s88, %s' % (v(b0), v(b0)))
    p.I('v_lshlrev_b32 %s, 5, %s' % (v(b0), v(b0)))
    p.I('v_lshl_add_u32 %s, %s, 13, %s' % (v(b0), v(b1), v(b0)))
    p.I('v_lshl_add_u32 %s, %s, 8, %s' % (v(b0), v(t2), v(b0)))
    p.I('v_lshrrev_b32 %s, 5, %s' % (v(t2), v(t)))
    p.I('v_lshl_add_u32 %s, %s, 11, %s' % (v(b0), v(t2), v(b0)))
    p.I('v_and_b32 %s, 3, %s' % (v(t2), v(t)))
    p.I('v_lshl_add_u32 %s, %s, 3, %s' % (v(b0), v(t2), v(b0)))
    p.I('v_add_u32 %s, %d, %s' % (v(b0), lbase, v(b0)))
    p.I('v_xor_b32 %s, 128, %s' % (v(b1), v(b0)))
    assert lbase % 256 == 0 and NB * WBUF <= 65536 + 0
    sB, sMB = 75, 76
    p.I('s_mul_i32 %s, s88, %d' % (s(sB), 8 * 3584))
    p.I('s_lshl_b32 %s, s87, 8' % s(sT))
    p.I('s_add_u32 %s, %s, %s' % (s(sB), s(sB), s(sT)))
    p.I('s_lshl_b32 %s, s88, 11' % s(sMB))
    p.I('s_add_u32 %s, %s, %d' % (s(sMB), s(sMB), lbase))
    def dma(st):
        buf = st % NB
        for up in range(2):
            for i in range(2):
                p.I('s_add_u32 m0, %s, %d' % (s(sMB), buf * WBUF + up * 8192 + i * 1024))
                p.I('s_add_u32 %s, %s, %d' % (s(sSO), s(sB), (32 * st + 4 * i) * 3584))
                p.I('buffer_load_dwordx4 %s, %s, %s offen lds' % (v(vu if up else vg), s((R_WU if up else R_WG), 4), s(sSO)), tag='w%d' % st)
    def reads(st):
        buf = st % NB
        for kk in range(2):
            for pp in range(2):
                k = 2 * st + kk
                for rho in range(2):
                    p.I('ds_read_b64_tr_b16 %s, %s offset:%d' % (a((pp * 28 + k) * 4 + 2 * rho, 2), v(b1 if pp else b0), buf * WBUF + (16 * kk + 4 * rho) * 256))
    NST = 14
    for st in range(NB - 1): dma(st)
    for st in range(NST):
        p.waitvm('w%d' % st)
        p.I('s_waitcnt lgkmcnt(0)')
        p.I('s_barrier')
        if st + NB - 1 < NST: dma(st + NB - 1)
        reads(st)
        if colsum and st > 0:
            cs, ones = colsum
            for kk in range(2):
                for pp in range(2):
                    k = 2 * (st - 1) + kk
                    p.I('v_mfma_f32_32x32x16_bf16 %s, %s, %s, %s' % (v(cs[pp], 16), a((pp * 28 + k) * 4, 4), v(ones, 4), v(cs[pp], 16) if k else '0'))
    if colsum:
        cs, ones = colsum
        for kk in range(2):
            for pp in range(2):
                k = 2 * (NST - 1) + kk
                p.I('v_mfma_f32_32x32x16_bf16 %s, %s, %s, %s' % (v(cs[pp], 16), a((pp * 28 + k) * 4, 4), v(ones, 4), v(cs[pp], 16)))
    p.I('s_waitcnt lgkmcnt(0)')

def emit_ht_dma(p, va, sc='sc1'):
    sSO, sT, sB = 72, 73, 74
    p.C('---- hT tile -> LDS ----')
    vo = va.get(); t = va.get(); t2 = va.get()
    p.I('v_and_b32 %s, 63, v0' % v(t))
    p.I('v_lshrrev_b32 %s, 3, %s' % (v(t2), v(t)))
    p.I('v_lshlrev_b32 %s, 12, %s' % (v(vo), v(t2)))
    p.I('v_bfe_u32 %s, %s, 2, 1' % (v(t2), v(t)))
    p.I('v_lshrrev_b32 %s, 4, %s' % (v(t), v(t)))
    p.I('v_xor_b32 %s, %s, %s' % (v(t2), v(t2), v(t)))
    p.I('v_and_b32 %s, 1, %s' % (v(t2), v(t2)))
    p.I('v_lshl_add_u32 %s, %s, 6, %s' % (v(vo), v(t2), v(vo)))
    p.I('v_and_b32 %s, 3, v0' % v(t2))
    p.I('v_lshl_add_u32 %s, %s, 4, %s' % (v(vo), v(t2), v(vo)))
    p.I('s_lshl_b32 %s, s86, 8' % s(sB))
    p.I('s_lshl_b32 %s, s88, 15' % s(sT))
    p.I('s_add_u32 %s, %s, %s' % (s(sB), s(sB), s(sT)))
    p.I('s_add_u32 %s, %s, 0x%x' % (s(sB), s(sB), WS_HT))
    p.I('s_lshl_b32 %s, s88, 10' % s(sT))
    for half in range(2):
        for i in range(14):
            p.I('s_add_u32 m0, %s, %d' % (s(sT), L_HT + half * HT_HALF + i * 4096))
            p.I('s_add_u32 %s, %s, %d' % (s(sSO), s(sB), half * 128 + i * 32 * 4096))
            p.I('buffer_load_dwordx4 %s, %s, %s offen %s lds' % (v(vo), s(R_WS, 4), s(sSO), sc), tag='ht%d' % half)

def emit_b_addr(p, va):
    R = R2()
    R.b = [[va.get(), va.get()], [va.get(), va.get()]]
    t = va.get(); t2 = va.get()
    b = R.b[0][0]
    p.I('v_and_b32 %s, 63, v0' % v(t))
    p.I('v_bfe_u32 %s, %s, 2, 2' % (v(t2), v(t)))
    p.I('v_lshlrev_b32 %s, 7, %s' % (v(b), v(t2)))
    p.I('v_lshrrev_b32 %s, 5, %s' % (v(t2), v(t)))
    p.I('v_lshl_add_u32 %s, %s, 10, %s' % (v(b), v(t2), v(b)))
    p.I('v_bfe_u32 %s, %s, 3, 1' % (v(t2), v(t)))
    p.I('v_lshl_add_u32 %s, %s, 6, %s' % (v(b), v(t2), v(b)))
    p.I('v_bfe_u32 %s, %s, 4, 1' % (v(t2), v(t)))
    p.I('v_lshl_add_u32 %s, %s, 5, %s' % (v(b), v(t2), v(b)))
    p.I('v_and_b32 %s, 3, %s' % (v(t2), v(t)))
    p.I('v_lshl_add_u32 %s, %s, 3, %s' % (v(b), v(t2), v(b)))
    if L_HT: p.I('v_add_u32 %s, %d, %s' % (v(b), L_HT, v(b)))
    p.I('v_xor_b32 %s, 64, %s' % (v(R.b[0][1]), v(b)))
    p.I('v_add_u32 %s, %d, %s' % (v(R.b[1][0]), HT_HALF, v(b)))
    p.I('v_add_u32 %s, %d, %s' % (v(R.b[1][1]), HT_HALF, v(R.b[0][1])))
    return R

def bread(dst, R, sig, k):
    base = R.b[sig >> 1][sig & 1]
    return ['ds_read_b64_tr_b16 %s, %s offset:%d' % (v(dst + 2 * rho, 2), v(base), (16 * k + 4 * rho) * 128) for rho in range(2)]

def emit_stats(p, va, R):
    p.C('---- LN2 stats ----')
    R.m = [va.get() for _ in range(4)]; R.r = [va.get() for _ in range(4)]; R.al = [va.get() for _ in range(4)]
    mark = va.n
    sm = va.get(2, 2); sq = sm + 1; ones = va.get(); base = va.get(); t = va.get(); t2 = va.get(); fr = va.get(16, 4); sa = va.get()
    p.I('s_and_b32 s72, s88, 1')
    p.I('s_lshl_b32 s72, s72, 6')
    p.I('v_xor_b32 %s, s72, %s' % (v(base), v(R.b[0][0])))
    p.I('s_lshr_b32 s72, s88, 1')
    p.I('s_mul_i32 s72, s72, %d' % HT_HALF)
    p.I('v_add_u32 %s, s72, %s' % (v(base), v(base)))
    p.I('v_mov_b32 %s, 0x3f803f80' % v(ones))
    p.I('v_mov_b32 %s, 0' % v(sm))
    p.I('v_mov_b32 %s, 0' % v(sq))
    def rd(k):
        for rho in range(2):
            p.I('ds_read_b64_tr_b16 %s, %s offset:%d' % (v(fr + 4 * (k % 4) + 2 * rho, 2), v(base), (16 * k + 4 * rho) * 128))
    for k in range(3): rd(k)
    for k in range(28):
        if k + 3 < 28: rd(k + 3)
        for i in range(4):
            p.I('v_dot2_f32_bf16 %s, %s, %s, %s' % (v(sm), v(fr + 4 * (k % 4) + i), v(ones), v(sm)))
            p.I('v_dot2_f32_bf16 %s, %s, %s, %s' % (v(sq), v(fr + 4 * (k % 4) + i), v(fr + 4 * (k % 4) + i), v(sq)))
    for x in (sm, sq):
        p.I('v_mov_b32 %s, %s' % (v(t), v(x)))
        p.I('v_permlane32_swap_b32 %s, %s' % (v(t), v(x)))
        p.I('v_add_f32 %s, %s, %s' % (v(x), v(x), v(t)))
    p.I('v_mul_f32 %s, 0x%08x, %s' % (v(sm), f32(1.0 / D), v(sm)))
    p.I('v_mul_f32 %s, 0x%08x, %s' % (v(sq), f32(1.0 / D), v(sq)))
    p.I('v_fma_f32 %s, -%s, %s, %s' % (v(sq), v(sm), v(sm), v(sq)))
    p.I('v_max_f32 %s, 0, %s' % (v(sq), v(sq)))
    p.I('v_add_f32 %s, 0x%08x, %s' % (v(sq), f32(1e-5), v(sq)))
    p.I('v_rsq_f32 %s, %s' % (v(sq), v(sq)))
    p.I('v_and_b32 %s, 31, v0' % v(t))
    p.I('v_lshlrev_b32 %s, 3, %s' % (v(t), v(t)))
    p.I('s_lshl_b32 s72, s88, 8')
    p.I('v_add_u32 %s, s72, %s' % (v(sa), v(t)))
    p.I('v_add_u32 %s, %d, %s' % (v(sa), L_STAT, v(sa)))
    p.I('ds_write_b64 %s, %s' % (v(sa), v(sm, 2)))
    p.I('v_add_u32 %s, %d, %s' % (v(t), L_STAT, v(t)))
    p.I('s_waitcnt lgkmcnt(0)')
    p.I('s_barrier')
    for sig in range(4):
        p.I('ds_read_b64 %s, %s offset:%d' % (v(fr + 2 * sig, 2), v(t), 256 * sig))
    for sig in range(4):
        p.I('v_mov_b32 %s, %s' % (v(R.m[sig]), v(fr + 2 * sig)))
        p.I('v_mov_b32 %s, %s' % (v(R.r[sig]), v(fr + 2 * sig + 1)))
        p.I('v_mul_f32 %s, 0x%08x, %s' % (v(R.al[sig]), f32(-1.4426950408889634), v(fr + 2 * sig + 1)))
    va.n = mark

def epilogue(acc, cs, R, sig, pp, tmp, gst, soff, sc):
    L = []
    m, r, al = R.m[sig], R.r[sig], R.al[sig]
    x = tmp; o = tmp + 8; pk = tmp + 16
    for j in range(8):
        L.append('v_fma_f32 %s, -%s, %s, %s' % (v(x + j), v(m), v(cs + j), v(acc + j)))
    for j in range(8):
        L.append('v_mul_f32 %s, %s, %s' % (v(x + j), v(al), v(x + j)))
    for j in range(8):
        L.append('v_fma_f32 %s, -%s, %s, %s' % (v(o + j), v(m), v(cs + 8 + j), v(acc + 8 + j)))
    for j in range(8):
        L.append('v_exp_f32 %s, %s' % (v(x + j), v(x + j)))
    for j in range(8):
        L.append('v_mul_f32 %s, %s, %s' % (v(o + j), v(r), v(o + j)))
    for j in range(8):
        L.append('v_add_f32 %s, 1.0, %s' % (v(x + j), v(x + j)))
    for j in range(8):
        L.append('v_rcp_f32 %s, %s' % (v(x + j), v(x + j)))
    for j in range(8):
        L.append('v_mul_f32 %s, %s, %s' % (v(o + j), v(x + j), v(o + j)))
    for i in range(4):
        L.append('v_cvt_pk_bf16_f32 %s, %s, %s' % (v(pk + i), v(o + 2 * i), v(o + 2 * i + 1)))
    L.append('s_add_u32 %s, %s, %d' % (s(soff), s(89), (sig * 112 + 4 * pp) * 1024))
    L.append('buffer_store_dwordx4 %s, %s, %s, %s offen %s' % (v(pk, 4), v(gst), s(R_WS, 4), s(soff), sc))
    return L

def emit_p2_main(p, va, R, cs, sc='sc1'):
    p.C('---- P2 main ----')
    acc = [[va.get(16, 4), va.get(16, 4)], [va.get(16, 4), va.get(16, 4)]]
    NF = 4
    fr = va.get(4 * NF, 4)
    tmp = va.get(20, 4); tmp2 = va.get(20, 4); gst = va.get()
    p.I('s_mul_i32 s89, s86, %d' % (4 * 112))
    p.I('s_lshl_b32 s72, s87, 3')
    p.I('s_add_u32 s89, s89, s72')
    p.I('s_add_u32 s89, s89, s88')
    p.I('s_lshl_b32 s89, s89, 10')
    p.I('s_add_u32 s89, s89, 0x%x' % WS_HH)
    p.I('v_and_b32 %s, 63, v0' % v(gst))
    p.I('v_lshlrev_b32 %s, 4, %s' % (v(gst), v(gst)))
    seq = [(sig, k) for sig in range(4) for k in range(28)]
    PRE = NF - 1
    def rd(i):
        sig, k = seq[i]
        return bread(fr + 4 * (i % NF), R, sig, k)
    for i in range(PRE):
        for x in rd(i): p.I(x)
    pend = []
    for i, (sig, k) in enumerate(seq):
        A = acc[sig & 1]
        if k == 0 and sig > 0:
            pend = epilogue(acc[(sig - 1) & 1][0], cs[0], R, sig - 1, 0, tmp, gst, 72, sc) + epilogue(acc[(sig - 1) & 1][1], cs[1], R, sig - 1, 1, tmp2, gst, 73, sc)
            pi = 0
        b = fr + 4 * (i % NF)
        nxt = rd(i + PRE) if i + PRE < len(seq) else []
        for pp in range(2):
            p.I('v_mfma_f32_32x32x16_bf16 %s, %s, %s, %s' % (v(A[pp], 16), a((pp * 28 + k) * 4, 4), v(b, 4), v(A[pp], 16) if k else '0'))
            if nxt: p.I(nxt[pp])
            if pend and k >= 1:
                n = 3
                for x in pend[pi:pi + n]: p.I(x)
                pi += n
        if k == 27 and pend:
            for x in pend[pi:]: p.I(x)
            pend = []
    for x in epilogue(acc[1][0], cs[0], R, 3, 0, tmp, gst, 72, sc) + epilogue(acc[1][1], cs[1], R, 3, 1, tmp2, gst, 73, sc): p.I(x)
```

```python
from common import *

RED_Q = 32 * 272
RED_T = 4 * RED_Q
class R3: pass

def emit_p3_ids(p):
    p.I('s_and_b32 s72, s2, 7')
    p.I('s_lshr_b32 s73, s2, 3')
    p.I('s_mul_i32 s74, s73, 37')
    p.I('s_lshr_b32 s74, s74, 8')
    p.I('s_mul_i32 s75, s74, 7')
    p.I('s_sub_u32 s91, s73, s75')
    p.I('s_lshl_b32 s90, s72, 2')
    p.I('s_add_u32 s90, s90, s74')
    p.I('v_readfirstlane_b32 s88, v0')
    p.I('s_lshr_b32 s88, s88, 6')

def emit_wd_stage(p, va, lbase, NB=4):
    sSO, sT, sB, sMB = 72, 73, 74, 75
    p.C('---- stage Wd into AGPRs ----')
    vo = va.get(); t = va.get(); t2 = va.get(); b0 = va.get(); b1 = va.get()
    p.I('v_and_b32 %s, 63, v0' % v(t))
    p.I('v_lshrrev_b32 %s, 3, %s' % (v(t2), v(t)))
    p.I('v_mul_u32_u24 %s, 896, %s' % (v(vo), v(t2)))
    p.I('v_bfe_u32 %s, %s, 2, 1' % (v(t2), v(t)))
    p.I('v_bfe_u32 %s, %s, 4, 1' % (v(b0), v(t)))
    p.I('v_xor_b32 %s, %s, %s' % (v(t2), v(t2), v(b0)))
    p.I('v_lshl_add_u32 %s, %s, 6, %s' % (v(vo), v(t2), v(vo)))
    p.I('v_and_b32 %s, 3, %s' % (v(t2), v(t)))
    p.I('v_lshl_add_u32 %s, %s, 4, %s' % (v(vo), v(t2), v(vo)))
    p.I('v_bfe_u32 %s, %s, 2, 2' % (v(t2), v(t)))
    p.I('v_lshlrev_b32 %s, 7, %s' % (v(b0), v(t2)))
    p.I('v_lshrrev_b32 %s, 5, %s' % (v(t2), v(t)))
    p.I('v_lshl_add_u32 %s, %s, 9, %s' % (v(b0), v(t2), v(b0)))
    p.I('v_bfe_u32 %s, %s, 3, 1' % (v(t2), v(t)))
    p.I('v_lshl_add_u32 %s, %s, 6, %s' % (v(b0), v(t2), v(b0)))
    p.I('v_bfe_u32 %s, %s, 4, 1' % (v(t2), v(t)))
    p.I('v_lshl_add_u32 %s, %s, 5, %s' % (v(b0), v(t2), v(b0)))
    p.I('v_and_b32 %s, 3, %s' % (v(t2), v(t)))
    p.I('v_lshl_add_u32 %s, %s, 3, %s' % (v(b0), v(t2), v(b0)))
    p.I('s_mul_i32 %s, s88, %d' % (s(sMB), NB * 4096))
    p.I('s_add_u32 %s, %s, %d' % (s(sMB), s(sMB), lbase))
    p.I('v_add_u32 %s, %s, %s' % (v(b0), s(sMB), v(b0)))
    p.I('v_xor_b32 %s, 64, %s' % (v(b1), v(b0)))
    assert lbase % 128 == 0
    p.I('s_mul_i32 %s, s88, %d' % (s(sB), 448 * 896))
    p.I('s_lshl_b32 %s, s91, 7' % s(sT))
    p.I('s_add_u32 %s, %s, %s' % (s(sB), s(sB), s(sT)))
    def dma(st):
        for i in range(4):
            p.I('s_add_u32 m0, %s, %d' % (s(sMB), (st % NB) * 4096 + i * 1024))
            p.I('s_add_u32 %s, %s, %d' % (s(sSO), s(sB), (32 * st + 8 * i) * 896))
            p.I('buffer_load_dwordx4 %s, %s, %s offen lds' % (v(vo), s(R_WD, 4), s(sSO)), tag='wd%d' % st)
    def reads(st):
        for kk in range(2):
            k = 2 * st + kk
            for dt in range(2):
                for rho in range(2):
                    p.I('ds_read_b64_tr_b16 %s, %s offset:%d' % (a((k * 2 + dt) * 4 + 2 * rho, 2), v(b1 if dt else b0), (st % NB) * 4096 + (16 * kk + 8 * rho) * 128))
    NST = 14
    for st in range(NB - 1): dma(st)
    for st in range(NST):
        if st + NB - 1 < NST:
            p.I('s_waitcnt lgkmcnt(0)')
            dma(st + NB - 1)
        p.waitvm('wd%d' % st)
        reads(st)
    p.I('s_waitcnt lgkmcnt(0)')

def emit_p3_main(p, va, lres, lred, sc='sc1', st_=None):
    R = R3()
    p.C('---- P3 main ----')
    sT, sT2, sH = 72, 73, 74
    vr = va.get(); t = va.get(); t2 = va.get(); lane = va.get()
    p.I('v_and_b32 %s, 63, v0' % v(lane))
    p.I('v_lshrrev_b32 %s, 2, %s' % (v(t), v(lane)))
    p.I('v_lshlrev_b32 %s, 12, %s' % (v(vr), v(t)))
    p.I('v_and_b32 %s, 3, %s' % (v(t), v(lane)))
    p.I('v_lshl_add_u32 %s, %s, 4, %s' % (v(vr), v(t), v(vr)))
    sSA = 92
    p.I('s_lshr_b32 %s, s90, 1' % s(sT))
    p.I('s_lshl_b32 %s, %s, 2' % (s(sT), s(sT)))
    p.I('s_and_b32 %s, s90, 1' % s(sT2))
    p.I('s_add_u32 %s, %s, %s' % (s(sSA), s(sT), s(sT2)))
    p.I('s_lshl_b32 %s, s91, 18' % s(sT))
    p.I('s_lshl_b32 %s, s88, 16' % s(sT2))
    p.I('s_add_u32 %s, %s, %s' % (s(sT), s(sT), s(sT2)))
    p.I('s_lshl_b32 %s, %s, 6' % (s(sT2), s(sSA)))
    p.I('s_add_u32 %s, %s, %s' % (s(sT), s(sT), s(sT2)))
    p.I('s_add_u32 %s, %s, 0x%x' % (s(sT), s(sT), WS_HT))
    p.I('s_lshl_b32 %s, s88, 10' % s(sT2))
    p.I('s_add_u32 m0, %s, %d' % (s(sT2), lres))
    p.I('s_nop 0')
    p.I('buffer_load_dwordx4 %s, %s, %s offen %s lds' % (v(vr), s(R_WS, 4), s(sT), sc), tag='res')
    p.I('s_add_u32 m0, %s, %d' % (s(sT2), lres + 4096))
    p.I('s_add_u32 %s, %s, 128' % (s(sT), s(sT)))
    p.I('buffer_load_dwordx4 %s, %s, %s offen %s lds' % (v(vr), s(R_WS, 4), s(sT), sc), tag='res')
    vh = va.get()
    p.I('v_lshlrev_b32 %s, 4, %s' % (v(vh), v(lane)))
    p.I('s_mul_i32 %s, %s, 112' % (s(sH), s(sSA)))
    p.I('s_mul_i32 %s, s88, 28' % s(sT))
    p.I('s_add_u32 %s, %s, %s' % (s(sH), s(sH), s(sT)))
    p.I('s_lshl_b32 %s, %s, 10' % (s(sH), s(sH)))
    p.I('s_add_u32 %s, %s, 0x%x' % (s(sH), s(sH), WS_HH))
    NR = 16
    ring = va.get(4 * NR, 4)
    acc = [[va.get(16, 4), va.get(16, 4)], [va.get(16, 4), va.get(16, 4)]]
    seq = [(ti, k) for ti in range(2) for k in range(28)]
    def ld(i):
        ti, k = seq[i]
        p.I('s_add_u32 %s, %s, %d' % (s(sT), s(sH), (ti * 2 * 112 + k) * 1024))
        p.I('buffer_load_dwordx4 %s, %s, %s, %s offen %s' % (v(ring + 4 * (i % NR), 4), v(vh), s(R_WS, 4), s(sT), sc))
    for i in range(NR - 1): ld(i)
    for i, (ti, k) in enumerate(seq):
        b = ring + 4 * (i % NR)
        for dt in range(2):
            p.I('v_mfma_f32_32x32x16_bf16 %s, %s, %s, %s' % (v(acc[ti][dt], 16), a((k * 2 + dt) * 4, 4), v(b, 4), v(acc[ti][dt], 16) if k else '0'))
        if i + NR - 1 < len(seq): ld(i + NR - 1)
    if st_: st_(p, 4)
    p.C('---- P3 reduction ----')
    wa = va.get(); ra = va.get(); ta = va.get(); go = va.get()
    p.I('v_and_b32 %s, 31, %s' % (v(t), v(lane)))
    p.I('v_mul_u32_u24 %s, 272, %s' % (v(wa), v(t)))
    p.I('v_lshrrev_b32 %s, 5, %s' % (v(t), v(lane)))
    p.I('v_lshl_add_u32 %s, %s, 4, %s' % (v(wa), v(t), v(wa)))
    p.I('s_mul_i32 %s, s88, %d' % (s(sT), RED_Q))
    p.I('s_add_u32 %s, %s, %d' % (s(sT), s(sT), lred))
    p.I('v_add_u32 %s, %s, %s' % (v(wa), s(sT), v(wa)))
    p.I('s_and_b32 %s, s88, 1' % s(sT))
    p.I('s_lshl_b32 %s, %s, 4' % (s(sT), s(sT)))
    p.I('v_and_b32 %s, 15, %s' % (v(t), v(lane)))
    p.I('v_add_u32 %s, %s, %s' % (v(t), s(sT), v(t)))
    p.I('v_mul_u32_u24 %s, 272, %s' % (v(ra), v(t)))
    p.I('v_mul_u32_u24 %s, 896, %s' % (v(go), v(t)))
    p.I('v_lshrrev_b32 %s, 4, %s' % (v(t2), v(lane)))
    p.I('v_lshl_add_u32 %s, %s, 5, %s' % (v(ra), v(t2), v(ra)))
    p.I('v_lshl_add_u32 %s, %s, 4, %s' % (v(go), v(t2), v(go)))
    p.I('s_lshr_b32 %s, s88, 1' % s(sT))
    p.I('s_lshl_b32 %s, %s, 7' % (s(sT2), s(sT)))
    p.I('s_add_u32 %s, %s, %d' % (s(sT2), s(sT2), lred))
    p.I('v_add_u32 %s, %s, %s' % (v(ra), s(sT2), v(ra)))
    p.I('s_lshl_b32 %s, %s, 6' % (s(sT), s(sT)))
    p.I('s_lshl_b32 %s, s91, 7' % s(sT2))
    p.I('s_add_u32 %s, %s, %s' % (s(sT), s(sT), s(sT2)))
    p.I('s_mul_i32 %s, %s, %d' % (s(sT2), s(sSA), 32 * 896))
    p.I('s_add_u32 %s, %s, %s' % (s(sT), s(sT), s(sT2)))
    p.I('v_add_u32 %s, %s, %s' % (v(go), s(sT), v(go)))
    p.I('v_lshlrev_b32 %s, 9, %s' % (v(ta), v(t2)))
    p.I('v_bfe_u32 %s, %s, 2, 2' % (v(t), v(lane)))
    p.I('v_lshl_add_u32 %s, %s, 6, %s' % (v(ta), v(t), v(ta)))
    p.I('v_and_b32 %s, 3, %s' % (v(t), v(lane)))
    p.I('v_lshl_add_u32 %s, %s, 3, %s' % (v(ta), v(t), v(ta)))
    p.I('s_lshr_b32 %s, s88, 1' % s(sT))
    p.I('s_lshl_b32 %s, %s, 11' % (s(sT), s(sT)))
    p.I('s_and_b32 %s, s88, 1' % s(sT2))
    p.I('s_lshl_b32 %s, %s, 5' % (s(sT2), s(sT2)))
    p.I('s_add_u32 %s, %s, %s' % (s(sT), s(sT), s(sT2)))
    p.I('s_add_u32 %s, %s, %d' % (s(sT), s(sT), lres))
    p.I('v_add_u32 %s, %s, %s' % (v(ta), s(sT), v(ta)))
    for ti in range(2):
        for dt in range(2):
            for i in range(4):
                p.I('ds_write_b128 %s, %s offset:%d' % (v(wa), v(acc[ti][dt] + 4 * i, 4), ti * RED_T + dt * 128 + i * 32))
    p.waitvm('res')
    p.I('s_waitcnt lgkmcnt(0)')
    p.I('s_barrier')
    rd = ring
    res = va.get(4, 4); sm = va.get(8, 4); pk = va.get(4, 4)
    p.I('s_mov_b32 %s, %d' % (s(sT), 2 * 32 * 896))
    for ti in range(2):
        for rho in range(2):
            p.I('ds_read_b64_tr_b16 %s, %s offset:%d' % (v(res + 2 * rho, 2), v(ta), ti * 4096 + rho * 256))
        for qq in range(4):
            for hf in range(2):
                p.I('ds_read_b128 %s, %s offset:%d' % (v(rd + 8 * qq + 4 * hf, 4), v(ra), ti * RED_T + qq * RED_Q + hf * 16))
        for i in range(4):
            p.I('v_lshlrev_b32 %s, 16, %s' % (v(sm + 2 * i), v(res + i)))
            p.I('v_and_b32 %s, 0xffff0000, %s' % (v(sm + 2 * i + 1), v(res + i)))
        for qq in range(4):
            for i in range(4):
                p.I('v_pk_add_f32 %s, %s, %s' % (v(sm + 2 * i, 2), v(sm + 2 * i, 2), v(rd + 8 * qq + 2 * i, 2)))
        for i in range(4):
            p.I('v_cvt_pk_bf16_f32 %s, %s, %s' % (v(pk + i), v(sm + 2 * i), v(sm + 2 * i + 1)))
        p.I('buffer_store_dwordx4 %s, %s, %s, %s offen' % (v(pk, 4), v(go), s(R_OUT, 4), s(sT) if ti else '0'))
```

```python
import sys
from common import *
import p0, p1, p2, p3
def prologue(p):
    p.I('s_cmp_ge_u32 s2, %d' % NWG)
    p.I('s_cbranch_scc1 L_end_%s' % p.name)
    load_kernargs(p)
    p.I('s_waitcnt lgkmcnt(0)')
    srd(p, R_Q, P_Q, S * D * 2); srd(p, R_K, P_K, S * D * 2); srd(p, R_V, P_V, S * D * 2); srd(p, R_WS, P_WS, WS_END)
def k_p0():
    p = Prog(); p.name = 'p0_kernel'
    prologue(p)
    va = Alloc(1, 256)
    p0.emit_p0(p, va)
    p.I('s_waitcnt vmcnt(0)')
    p.L('L_end_' + p.name)
    p.I('s_endpgm')
    return p
def k_p1():
    p = Prog(); p.name = 'p1_kernel'
    prologue(p)
    va = Alloc(1, 256)
    R = p1.emit_p1_addr(p, va)
    mark = va.n
    p1.emit_filter_prep(p, va)
    va.n = mark
    p1.emit_p1_main(p, va, R)
    p.I('s_waitcnt vmcnt(0)')
    p.L('L_end_' + p.name)
    p.I('s_endpgm')
    return p
def k_p2():
    p = Prog(); p.name = 'p2_kernel'
    prologue(p)
    srd(p, R_WG, P_WG, D * F * 2); srd(p, R_WU, P_WU, D * F * 2)
    p2.emit_p2_ids(p)
    va = Alloc(1, 256)
    cs = [va.get(16, 4), va.get(16, 4)]
    mark = va.n
    ones = va.get(4, 4)
    for i in range(4): p.I('v_mov_b32 v%d, 0x3f803f80' % (ones + i))
    p2.emit_w_stage(p, va, 0, 4, colsum=(cs, ones))
    p.I('s_barrier')
    va.n = mark
    p2.emit_ht_dma(p, va)
    R = p2.emit_b_addr(p, va)
    p.I('s_waitcnt vmcnt(0)')
    p.I('s_barrier')
    p2.emit_stats(p, va, R)
    p2.emit_p2_main(p, va, R, cs)
    p.I('s_waitcnt vmcnt(0)')
    p.L('L_end_' + p.name)
    p.I('s_endpgm')
    return p
def k_p3(name='p3_kernel'):
    p = Prog(); p.name = name
    prologue(p)
    srd(p, R_WD, P_WD, D * F * 2); srd(p, R_OUT, P_OUT, S * D * 2)
    p3.emit_p3_ids(p)
    va = Alloc(1, 256)
    p3.emit_wd_stage(p, va, 0, 4)
    va.n = 1
    p3.emit_p3_main(p, va, 65536, 65536 + 8192)
    p.I('s_waitcnt vmcnt(0)')
    p.L('L_end_' + p.name)
    p.I('s_endpgm')
    return p
P3_LDS = 65536 + 8192 + 2 * p3.RED_T
def build(kernels, fname):
    hdr = '\n'.join('; @launch kernel=%s grid=(%d,1,1) block=(256,1,1) lds=%d' % (k.name, g, l) for k, g, l in kernels)
    txt = HEADER % hdr
    kds = ''
    for k, g, l in kernels:
        body, ins = finish(k)
        t, kd = kernel_text(k.name, body)
        txt += t; kds += kd
        n = sum(1 for i in ins if i.is_real())
        print('%s: %d instructions, %d nops' % (k.name, n, sum(1 for i in ins if i.op == 's_nop')))
    txt += '.section .rodata,"a"\n.p2align 6\n' + kds.replace('.amdhsa_kernel', '.p2align 6\n.amdhsa_kernel')
    open(fname, 'w').write(txt)
if __name__ == '__main__':
    build([(k_p0(), NWG, 0)], 't_p0.s')
    build([(k_p0(), NWG, 0), (k_p1(), NWG, p1.P1_LDS_END)], 't_p1.s')
    build([(k_p0(), NWG, 0), (k_p1(), NWG, p1.P1_LDS_END), (k_p2(), NWG, p2.P2_LDS_END)], 't_p2.s')
    build([(k_p0(), NWG, 0), (k_p1(), NWG, p1.P1_LDS_END), (k_p2(), NWG, p2.P2_LDS_END), (k_p3(), NWG, P3_LDS)], 't_p3.s')
```

```python
import sys
from common import *
import p0, p1, p2, p3
def prologue(p):
    p.I('s_cmp_ge_u32 s2, %d' % NWG)
    p.I('s_cbranch_scc1 L_end_%s' % p.name)
    load_kernargs(p)
    p.I('s_waitcnt lgkmcnt(0)')
    srd(p, R_Q, P_Q, S * D * 2); srd(p, R_K, P_K, S * D * 2); srd(p, R_V, P_V, S * D * 2); srd(p, R_WS, P_WS, WS_END)
def k_p0():
    p = Prog(); p.name = 'p0_kernel'
    prologue(p)
    va = Alloc(1, 256)
    p0.emit_p0(p, va)
    p.I('s_waitcnt vmcnt(0)')
    p.L('L_end_' + p.name)
    p.I('s_endpgm')
    return p
def k_p1():
    p = Prog(); p.name = 'p1_kernel'
    prologue(p)
    va = Alloc(1, 256)
    R = p1.emit_p1_addr(p, va)
    mark = va.n
    p1.emit_filter_prep(p, va)
    va.n = mark
    p1.emit_p1_main(p, va, R)
    p.I('s_waitcnt vmcnt(0)')
    p.L('L_end_' + p.name)
    p.I('s_endpgm')
    return p
def k_p2():
    p = Prog(); p.name = 'p2_kernel'
    prologue(p)
    srd(p, R_WG, P_WG, D * F * 2); srd(p, R_WU, P_WU, D * F * 2)
    p2.emit_p2_ids(p)
    va = Alloc(1, 256)
    cs = [va.get(16, 4), va.get(16, 4)]
    mark = va.n
    ones = va.get(4, 4)
    for i in range(4): p.I('v_mov_b32 v%d, 0x3f803f80' % (ones + i))
    p2.emit_w_stage(p, va, 0, 4, colsum=(cs, ones))
    p.I('s_barrier')
    va.n = mark
    p2.emit_ht_dma(p, va)
    R = p2.emit_b_addr(p, va)
    p.I('s_waitcnt vmcnt(0)')
    p.I('s_barrier')
    p2.emit_stats(p, va, R)
    p2.emit_p2_main(p, va, R, cs)
    p.I('s_waitcnt vmcnt(0)')
    p.L('L_end_' + p.name)
    p.I('s_endpgm')
    return p
def k_p3(name='p3_kernel'):
    p = Prog(); p.name = name
    prologue(p)
    srd(p, R_WD, P_WD, D * F * 2); srd(p, R_OUT, P_OUT, S * D * 2)
    p3.emit_p3_ids(p)
    va = Alloc(1, 256)
    p3.emit_wd_stage(p, va, 0, 4)
    va.n = 1
    p3.emit_p3_main(p, va, 65536, 65536 + 8192)
    p.I('s_waitcnt vmcnt(0)')
    p.L('L_end_' + p.name)
    p.I('s_endpgm')
    return p
P3_LDS = 65536 + 8192 + 2 * p3.RED_T
def build(kernels, fname):
    hdr = '\n'.join('; @launch kernel=%s grid=(%d,1,1) block=(256,1,1) lds=%d' % (k.name, g, l) for k, g, l in kernels)
    txt = HEADER % hdr
    kds = ''
    for k, g, l in kernels:
        body, ins = finish(k)
        t, kd = kernel_text(k.name, body)
        txt += t; kds += kd
        n = sum(1 for i in ins if i.is_real())
        print('%s: %d instructions, %d nops' % (k.name, n, sum(1 for i in ins if i.op == 's_nop')))
    txt += '.section .rodata,"a"\n.p2align 6\n' + kds.replace('.amdhsa_kernel', '.p2align 6\n.amdhsa_kernel')
    open(fname, 'w').write(txt)
if __name__ == '__main__':
    build([(k_p0(), NWG, 0)], 't_p0.s')
    build([(k_p0(), NWG, 0), (k_p1(), NWG, p1.P1_LDS_END)], 't_p1.s')
    build([(k_p0(), NWG, 0), (k_p1(), NWG, p1.P1_LDS_END), (k_p2(), NWG, p2.P2_LDS_END)], 't_p2.s')
    build([(k_p0(), NWG, 0), (k_p1(), NWG, p1.P1_LDS_END), (k_p2(), NWG, p2.P2_LDS_END), (k_p3(), NWG, P3_LDS)], 't_p3.s')
    def k_empty(name):
        p = Prog(); p.name = name
        p.I('s_endpgm')
        return p
    base = lambda: [(k_p0(), NWG, 0), (k_p1(), NWG, p1.P1_LDS_END), (k_p2(), NWG, p2.P2_LDS_END), (k_p3(), NWG, P3_LDS)]
    build(base() + [(k_empty('e%d_kernel' % i), NWG, 0) for i in range(4)], 'x_a1.s')
    build([(k_empty('e%d_kernel' % i), NWG, 0) for i in range(4)] + base(), 'x_a2.s')
    build([(k_empty('e%d_kernel' % i), 1, 0) for i in range(4)] + base(), 'x_a3.s')
```

```python
from asmlib import *

S, D, F = 2048, 448, 1792
KNAME = 'sequential_preLN__ssm_conv_h3__glu_gated_glu__prompt'
NWG = 224

WS_EPOCH = 0
WS_FLAGS = 0x1000
WS_STATS = 0x40000
WS_STAMP = 0x50000
WS_KVT = 0x100000
WS_XT = 0x300000
WS_HT = 0x500000
WS_HH = 0x700000
WS_END = 0xE00000

S_WG = 2
P_Q, P_K, P_V, P_SH, P_FK, P_SD, P_BX, P_WG = 4, 6, 8, 10, 12, 14, 16, 18
P_WU, P_WD, P_OUT, P_DBG, P_WS = 20, 22, 24, 26, 28
R_Q, R_K, R_V, R_WS, R_WG, R_WU, R_WD, R_OUT, R_T0, R_T1 = 32, 36, 40, 44, 48, 52, 56, 60, 64, 68
R_SH, R_SD = 4, 8
OOB = 0x80000000

def srd(p, r, ptr, nbytes):
    p.I('s_mov_b32 %s, %s' % (s(r), s(ptr)))
    p.I('s_and_b32 %s, %s, 0xffff' % (s(r + 1), s(ptr + 1)))
    p.I('s_mov_b32 %s, 0x%x' % (s(r + 2), nbytes))
    p.I('s_mov_b32 %s, 0x20000' % s(r + 3))

def load_kernargs(p):
    p.I('s_load_dwordx16 s[4:19], s[0:1], 0')
    p.I('s_load_dwordx8 s[20:27], s[0:1], 64')
    p.I('s_load_dwordx2 s[28:29], s[0:1], 96')

HEADER = '''; Kernarg layout (104 bytes, ptrs only, base s[0:1]): q k v shift_k ssm_k ssm_D B_x w_gate w_up w_down out debug ws
%s
.amdgcn_target "amdgcn-amd-amdhsa--gfx950"
.text
'''

def kernel_text(name, body, vgpr=512, accum=256, sgpr=102):
    t = '.globl %s\n.p2align 8\n.type %s,@function\n%s:\n%s\n' % (name, name, name, body)
    kd = '''.amdhsa_kernel %s
  .amdhsa_next_free_vgpr %d
  .amdhsa_next_free_sgpr %d
  .amdhsa_accum_offset %d
  .amdhsa_group_segment_fixed_size 0
  .amdhsa_kernarg_size 104
  .amdhsa_user_sgpr_count 2
  .amdhsa_user_sgpr_kernarg_segment_ptr 1
  .amdhsa_system_sgpr_workgroup_id_x 1
  .amdhsa_float_denorm_mode_32 3
.end_amdhsa_kernel
''' % (name, vgpr, sgpr, accum)
    return t, kd

class Alloc:
    def __init__(self, lo, hi):
        self.n = lo; self.hi = hi
    def get(self, k=1, align=1):
        if k >= 2 and align < 2: align = 2
        self.n = (self.n + align - 1) // align * align
        b = self.n; self.n += k
        assert self.n <= self.hi, 'out of registers'
        return b

def stamp_init(p, kidx):
    p.I('v_cmp_eq_u32 vcc, 0, v0')
    p.I('s_lshl_b32 s94, s2, 9')
    p.I('s_add_u32 s94, s94, 0x%x' % (WS_STAMP + kidx * 0x20000))
    p.I('v_mov_b32 v250, 0x%x' % OOB)
    p.I('v_mov_b32 v252, s94')
    p.I('v_cndmask_b32 v250, v250, v252, vcc')
def stamp_take(p):
    p.I('s_memrealtime s[96:97]')
    p.I('s_memtime s[98:99]')
def stamp_put(p, idx):
    p.I('s_waitcnt lgkmcnt(0)')
    for i in range(4): p.I('v_mov_b32 v%d, s%d' % (252 + i, 96 + i))
    p.I('buffer_store_dwordx4 v[252:255], v250, s[%d:%d], 0 offen offset:%d' % (R_WS, R_WS + 3, idx * 16))
def stamp(p, idx):
    stamp_take(p); stamp_put(p, idx)
```

```python
from common import *

def emit_p0(p, va, sc='sc1'):
    sRB, sC, sT, sT2 = 72, 73, 74, 75
    sK5, sKV0, sKV1, sX0, sX1, sMASK, sSEL0, sSEL1 = 76, 77, 78, 79, 80, 81, 82, 83
    p.C('---- P0: transpose kv / x, LN1 stats ----')
    p.I('s_and_b32 %s, s2, 31' % s(sRB))
    p.I('s_lshr_b32 %s, s2, 5' % s(sC))
    lane = va.get(); w = va.get(); cpl = va.get(); gq = va.get()
    vpos = va.get(); vneg = va.get(); vsh = va.get(); vst = va.get(); t0 = va.get(); t1 = va.get()
    p.I('v_and_b32 %s, 63, v0' % v(lane))
    p.I('v_lshrrev_b32 %s, 6, v0' % v(w))
    p.I('v_and_b32 %s, 7, %s' % (v(cpl), v(lane)))
    p.I('v_lshl_add_u32 %s, %s, 3, %s' % (v(cpl), v(w), v(cpl)))
    p.I('v_lshrrev_b32 %s, 3, %s' % (v(gq), v(lane)))
    p.I('s_lshl_b32 %s, %s, 6' % (s(sT), s(sRB)))
    p.I('v_lshl_add_u32 %s, %s, 3, %s' % (v(t0), v(gq), s(sT)))
    p.I('s_movk_i32 %s, 896' % s(sT2))
    p.I('v_mul_u32_u24 %s, %s, %s' % (v(vpos), s(sT2), v(t0)))
    p.I('s_lshl_b32 %s, %s, 7' % (s(sT), s(sC)))
    p.I('v_lshl_add_u32 %s, %s, 2, %s' % (v(t1), v(cpl), s(sT)))
    p.I('v_add_u32 %s, %s, %s' % (v(vpos), v(vpos), v(t1)))
    p.I('v_subrev_u32 %s, 2688, %s' % (v(vneg), v(vpos)))
    p.I('s_movk_i32 %s, 4480' % s(sK5))
    kd = va.get(12); vd = va.get(8); xd = va.get(8); shw = va.get(4, 4)
    for i in range(3):
        p.I('buffer_load_dword %s, %s, %s, 0 offen offset:%d' % (v(kd + i), v(vneg), s(R_K, 4), 896 * i))
    def rowload(dst, srdr):
        for r in range(8):
            if r < 5:
                p.I('buffer_load_dword %s, %s, %s, 0 offen offset:%d' % (v(dst + r), v(vpos), s(srdr, 4), 896 * r))
            else:
                p.I('buffer_load_dword %s, %s, %s, %s offen offset:%d' % (v(dst + r), v(vpos), s(srdr, 4), s(sK5), 896 * (r - 5)))
    rowload(kd + 3, R_K)
    p.I('s_lshl_b32 %s, %s, 9' % (s(sT), s(sC)))
    p.I('v_lshl_add_u32 %s, %s, 4, %s' % (v(vsh), v(cpl), s(sT)))
    p.I('buffer_load_dwordx4 %s, %s, %s, 0 offen' % (v(shw, 4), v(vsh), s(R_SH, 4)))
    rowload(vd, R_V)
    rowload(xd, R_Q)
    srow = va.get(); l16 = va.get(); vs = va.get(); sd = va.get(16, 4)
    p.I('v_lshrrev_b32 %s, 4, v0' % v(srow))
    p.I('s_lshl_b32 %s, %s, 6' % (s(sT), s(sRB)))
    p.I('s_lshl_b32 %s, %s, 4' % (s(sT2), s(sC)))
    p.I('s_add_u32 %s, %s, %s' % (s(sT), s(sT), s(sT2)))
    p.I('v_add_u32 %s, %s, %s' % (v(srow), s(sT), v(srow)))
    p.I('v_and_b32 %s, 15, v0' % v(l16))
    p.I('s_movk_i32 %s, 896' % s(sT2))
    p.I('v_mul_u32_u24 %s, %s, %s' % (v(vs), s(sT2), v(srow)))
    p.I('v_lshl_add_u32 %s, %s, 6, %s' % (v(vs), v(l16), v(vs)))
    p.I('s_cmp_lt_u32 %s, 4' % s(sC))
    p.I('s_cselect_b32 %s, 14, 0' % s(sT))
    p.I('v_cmp_gt_u32 vcc, %s, %s' % (s(sT), v(l16)))
    p.I('v_mov_b32 %s, 0x%x' % (v(t0), OOB))
    p.I('v_cndmask_b32 %s, %s, %s, vcc' % (v(vs), v(t0), v(vs)))
    for i in range(4):
        p.I('buffer_load_dwordx4 %s, %s, %s, 0 offen offset:%d' % (v(sd + 4 * i, 4), v(vs), s(R_Q, 4), 16 * i))
    p.I('s_lshl_b32 %s, %s, 18' % (s(sT), s(sC)))
    p.I('s_lshl_b32 %s, %s, 7' % (s(sT2), s(sRB)))
    p.I('s_add_u32 %s, %s, %s' % (s(sT), s(sT), s(sT2)))
    p.I('v_lshlrev_b32 %s, 13, %s' % (v(vst), v(cpl)))
    p.I('v_lshl_add_u32 %s, %s, 4, %s' % (v(vst), v(gq), v(vst)))
    p.I('v_add_u32 %s, %s, %s' % (v(vst), s(sT), v(vst)))
    p.I('s_mov_b32 %s, 0x%x' % (s(sKV0), WS_KVT))
    p.I('s_mov_b32 %s, 0x%x' % (s(sKV1), WS_KVT + 4096))
    p.I('s_mov_b32 %s, 0x%x' % (s(sX0), WS_XT))
    p.I('s_mov_b32 %s, 0x%x' % (s(sX1), WS_XT + 4096))
    p.I('s_mov_b32 %s, 0xffff0000' % s(sMASK))
    p.I('s_mov_b32 %s, 0x05040100' % s(sSEL0))
    p.I('s_mov_b32 %s, 0x07060302' % s(sSEL1))
    W = va.get(8, 2)
    p.I('v_lshlrev_b32 %s, 16, %s' % (v(W + 0), v(shw + 0)))
    p.I('v_lshlrev_b32 %s, 16, %s' % (v(W + 1), v(shw + 2)))
    p.I('v_and_b32 %s, %s, %s' % (v(W + 2), s(sMASK), v(shw + 0)))
    p.I('v_and_b32 %s, %s, %s' % (v(W + 3), s(sMASK), v(shw + 2)))
    p.I('v_lshlrev_b32 %s, 16, %s' % (v(W + 4), v(shw + 1)))
    p.I('v_lshlrev_b32 %s, 16, %s' % (v(W + 5), v(shw + 3)))
    p.I('v_and_b32 %s, %s, %s' % (v(W + 6), s(sMASK), v(shw + 1)))
    p.I('v_and_b32 %s, %s, %s' % (v(W + 7), s(sMASK), v(shw + 3)))
    K = va.get(22, 2)
    for i in range(11):
        p.I('v_lshlrev_b32 %s, 16, %s' % (v(K + 2 * i), v(kd + i)))
        p.I('v_and_b32 %s, %s, %s' % (v(K + 2 * i + 1), s(sMASK), v(kd + i)))
    A = va.get(16, 2)
    for r in range(8):
        p.I('v_pk_mul_f32 %s, %s, %s' % (v(A + 2 * r, 2), v(K + 2 * (r + 3), 2), v(W, 2)))
    for j in range(1, 4):
        for r in range(8):
            p.I('v_pk_fma_f32 %s, %s, %s, %s' % (v(A + 2 * r, 2), v(K + 2 * (r + 3 - j), 2), v(W + 2 * j, 2), v(A + 2 * r, 2)))
    V = K
    for r in range(8):
        p.I('v_lshlrev_b32 %s, 16, %s' % (v(V + 2 * r), v(vd + r)))
        p.I('v_and_b32 %s, %s, %s' % (v(V + 2 * r + 1), s(sMASK), v(vd + r)))
    for r in range(8):
        p.I('v_pk_mul_f32 %s, %s, %s' % (v(A + 2 * r, 2), v(A + 2 * r, 2), v(V + 2 * r, 2)))
    o = va.get(16, 4)
    for ch in range(2):
        for i in range(4):
            p.I('v_cvt_pk_bf16_f32 %s, %s, %s' % (v(o + 4 * ch + i), v(A + 2 * (7 - 2 * i) + ch), v(A + 2 * (6 - 2 * i) + ch)))
    p.I('buffer_store_dwordx4 %s, %s, %s, %s offen %s' % (v(o, 4), v(vst), s(R_WS, 4), s(sKV0), sc))
    p.I('buffer_store_dwordx4 %s, %s, %s, %s offen %s' % (v(o + 4, 4), v(vst), s(R_WS, 4), s(sKV1), sc))
    for ch in range(2):
        for i in range(4):
            p.I('v_perm_b32 %s, %s, %s, %s' % (v(o + 8 + 4 * ch + i), v(xd + 2 * i + 1), v(xd + 2 * i), s(sSEL0 + ch)))
    p.I('buffer_store_dwordx4 %s, %s, %s, %s offen %s' % (v(o + 8, 4), v(vst), s(R_WS, 4), s(sX0), sc))
    p.I('buffer_store_dwordx4 %s, %s, %s, %s offen %s' % (v(o + 12, 4), v(vst), s(R_WS, 4), s(sX1), sc))
    sm = va.get(2, 2); sq = sm + 1; ones = va.get(); r_ = va.get(2, 2); vsa = va.get()
    p.I('v_mov_b32 %s, 0x3f803f80' % v(ones))
    p.I('v_mov_b32 %s, 0' % v(sm))
    p.I('v_mov_b32 %s, 0' % v(sq))
    for i in range(16):
        p.I('v_dot2_f32_bf16 %s, %s, %s, %s' % (v(sm), v(sd + i), v(ones), v(sm)))
        p.I('v_dot2_f32_bf16 %s, %s, %s, %s' % (v(sq), v(sd + i), v(sd + i), v(sq)))
    q0 = va.get(); q1 = va.get()
    p.I('v_lshrrev_b32 %s, 10, %s' % (v(vsa), v(srow)))
    p.I('v_lshlrev_b32 %s, 13, %s' % (v(vsa), v(vsa)))
    p.I('v_bfe_u32 %s, %s, 3, 2' % (v(q0), v(srow)))
    p.I('v_add_u32 %s, 1, %s' % (v(q1), v(q0)))
    p.I('v_bfe_u32 %s, %s, 1, 1' % (v(q1), v(q1)))
    p.I('v_lshl_add_u32 %s, %s, 12, %s' % (v(vsa), v(q1), v(vsa)))
    p.I('v_and_b32 %s, 1, %s' % (v(q0), v(q0)))
    p.I('v_lshl_add_u32 %s, %s, 9, %s' % (v(vsa), v(q0), v(vsa)))
    p.I('v_bfe_u32 %s, %s, 1, 2' % (v(q0), v(srow)))
    p.I('v_lshl_add_u32 %s, %s, 10, %s' % (v(vsa), v(q0), v(vsa)))
    p.I('v_bfe_u32 %s, %s, 5, 5' % (v(q0), v(srow)))
    p.I('v_lshl_add_u32 %s, %s, 4, %s' % (v(vsa), v(q0), v(vsa)))
    p.I('v_and_b32 %s, 1, %s' % (v(q0), v(srow)))
    p.I('v_lshl_add_u32 %s, %s, 3, %s' % (v(vsa), v(q0), v(vsa)))
    p.I('v_add_u32 %s, 0x%x, %s' % (v(vsa), WS_STATS, v(vsa)))
    p.I('s_cmp_lt_u32 %s, 4' % s(sC))
    p.I('s_cselect_b32 %s, 1, 0' % s(sT))
    p.I('v_cmp_gt_u32 vcc, %s, %s' % (s(sT), v(l16)))
    p.I('v_mov_b32 %s, 0x%x' % (v(t0), OOB))
    p.I('v_cndmask_b32 %s, %s, %s, vcc' % (v(vsa), v(t0), v(vsa)))
    for rot in (8, 4, 2, 1):
        p.I('v_add_f32_dpp %s, %s, %s row_ror:%d row_mask:0xf bank_mask:0xf' % (v(sm), v(sm), v(sm), rot))
        p.I('v_add_f32_dpp %s, %s, %s row_ror:%d row_mask:0xf bank_mask:0xf' % (v(sq), v(sq), v(sq), rot))
    p.I('v_mul_f32 %s, 0x%08x, %s' % (v(sm), f32(1.0 / D), v(sm)))
    p.I('v_mul_f32 %s, 0x%08x, %s' % (v(sq), f32(1.0 / D), v(sq)))
    p.I('v_fma_f32 %s, -%s, %s, %s' % (v(sq), v(sm), v(sm), v(sq)))
    p.I('v_max_f32 %s, 0, %s' % (v(sq), v(sq)))
    p.I('v_add_f32 %s, 0x%08x, %s' % (v(sq), f32(1e-5), v(sq)))
    p.I('v_rsq_f32 %s, %s' % (v(r_), v(sq)))
    p.I('v_mul_f32 %s, -%s, %s' % (v(r_ + 1), v(sm), v(r_)) if False else 'v_mul_f32_e64 %s, -%s, %s' % (v(r_ + 1), v(sm), v(r_)))
    p.I('buffer_store_dwordx2 %s, %s, %s, 0 offen %s' % (v(r_, 2), v(vsa), s(R_WS, 4), sc))

import struct
def f32(x):
    return struct.unpack('<I', struct.pack('<f', x))[0]
```

```python
from common import *

FCH = 2096 * 16
LF = 0
LK = 2 * FCH
KCH = 96 * 80
LE = LK + 2 * KCH
P1_LDS_END = LE + 4 * 4096
BQ_TABLE = 0x71352460

def emit_filter_prep(p, va):
    sT, sT2 = 72, 73
    p.C('---- filter copies ----')
    for ch, R in ((0, R_T0), (1, R_T1)):
        p.I('s_lshl_b32 %s, s2, 13' % s(sT))
        if ch: p.I('s_add_u32 %s, %s, 4096' % (s(sT), s(sT)))
        p.I('s_add_u32 %s, %s, %s' % (s(R), s(P_FK), s(sT)))
        p.I('s_addc_u32 %s, %s, 0' % (s(R + 1), s(P_FK + 1)))
        p.I('s_and_b32 %s, %s, 0xffff' % (s(R + 1), s(R + 1)))
        p.I('s_mov_b32 %s, 4096' % s(R + 2))
        p.I('s_mov_b32 %s, 0x20000' % s(R + 3))
    vo = va.get(); vo2 = va.get(); z = va.get(4, 4); za = va.get(); t = va.get()
    p.I('v_lshlrev_b32 %s, 4, v0' % v(vo2))
    p.I('v_subrev_u32 %s, 16, %s' % (v(vo), v(vo2)))
    w = [va.get(8, 4), va.get(8, 4)]
    for ch, R in ((0, R_T0), (1, R_T1)):
        p.I('buffer_load_dwordx4 %s, %s, %s, 0 offen' % (v(w[ch], 4), v(vo), s(R, 4)))
        p.I('buffer_load_dwordx4 %s, %s, %s, 0 offen' % (v(w[ch] + 4, 4), v(vo2), s(R, 4)))
    for i in range(4): p.I('v_mov_b32 %s, 0' % v(z + i))
    p.I('v_and_b32 %s, 31, v0' % v(za))
    p.I('v_lshrrev_b32 %s, 2, %s' % (v(za), v(za)))
    p.I('v_mul_u32_u24 %s, 262, %s' % (v(za), v(za)))
    p.I('v_and_b32 %s, 3, v0' % v(t))
    p.I('v_add_u32 %s, %s, %s' % (v(za), v(za), v(t)))
    p.I('v_bfe_u32 %s, v0, 5, 1' % v(t))
    p.I('v_mul_u32_u24 %s, %d, %s' % (v(t), FCH // 16, v(t)))
    p.I('v_add_lshl_u32 %s, %s, %s, 4' % (v(za), v(za), v(t)))
    p.I('ds_write_b128 %s, %s offset:%d' % (v(za), v(z, 4), LF))
    p.I('v_bfe_u32 %s, v0, 2, 5' % v(za))
    p.I('v_mul_u32_u24 %s, 80, %s' % (v(za), v(za)))
    p.I('v_and_b32 %s, 3, v0' % v(t))
    p.I('v_lshl_add_u32 %s, %s, 4, %s' % (v(za), v(t), v(za)))
    p.I('v_lshrrev_b32 %s, 7, v0' % v(t))
    p.I('v_mul_u32_u24 %s, %d, %s' % (v(t), KCH, v(t)))
    p.I('v_add_u32 %s, %s, %s' % (v(za), v(za), v(t)))
    p.I('v_add_u32 %s, %d, %s' % (v(za), LK, v(za)))
    p.I('ds_write_b128 %s, %s' % (v(za), v(z, 4)))
    w1 = va.get(6, 2); sA = va.get(6, 2); sB = va.get(6, 2)
    for ch in range(2):
        W = w[ch]
        off = lambda sg: LF + ch * FCH + (262 * sg + 4) * 16
        p.I('ds_write_b128 %s, %s offset:%d' % (v(vo2), v(W + 4, 4), off(0)))
        p.I('ds_write_b128 %s, %s offset:%d' % (v(vo2), v(W + 2, 4), off(4)))
        for i in range(6): p.I('v_mov_b32 %s, %s' % (v(w1 + i), v(W + 1 + i)))
        p.I('ds_write_b128 %s, %s offset:%d' % (v(vo2), v(w1, 4), off(2)))
        p.I('ds_write_b128 %s, %s offset:%d' % (v(vo2), v(w1 + 2, 4), off(6)))
        for i in range(6): p.I('v_alignbit_b32 %s, %s, %s, 16' % (v(sA + i), v(W + i + 1), v(W + i)))
        p.I('ds_write_b128 %s, %s offset:%d' % (v(vo2), v(sA, 4), off(1)))
        p.I('ds_write_b128 %s, %s offset:%d' % (v(vo2), v(sA + 2, 4), off(5)))
        for i in range(6): p.I('v_alignbit_b32 %s, %s, %s, 16' % (v(sB + i), v(W + i + 2), v(W + i + 1)))
        p.I('ds_write_b128 %s, %s offset:%d' % (v(vo2), v(sB, 4), off(3)))
        p.I('ds_write_b128 %s, %s offset:%d' % (v(vo2), v(sB + 2, 4), off(7)))


class P1Regs:
    pass

def emit_p1_addr(p, va):
    R = P1Regs()
    sT, sT2, sCH, sKS = 72, 73, 84, 85
    R.sCH, R.sKS = sCH, sKS
    p.C('---- P1 addresses ----')
    R.aA = va.get(); R.aB = va.get(); R.gX = va.get(); R.gY = va.get(); R.lX = va.get(); R.lY = va.get()
    R.gS = va.get(); R.gS2 = va.get(); R.gH = va.get(); R.ex = va.get(); R.exr = va.get(); R.gD = va.get()
    l = va.get(); t = va.get(); t2 = va.get(); b = va.get(); n = va.get(); h = va.get()
    p.I('v_readfirstlane_b32 %s, v0' % s(sT))
    p.I('s_lshr_b32 %s, %s, 7' % (s(sCH), s(sT)))
    p.I('s_bfe_u32 %s, %s, 0x10006' % (s(sKS), s(sT)))
    p.I('v_and_b32 %s, 63, v0' % v(l))
    p.I('v_and_b32 %s, 31, v0' % v(n))
    p.I('v_bfe_u32 %s, v0, 5, 1' % v(h))
    p.I('v_lshrrev_b32 %s, 2, %s' % (v(t), v(n)))
    p.I('v_lshlrev_b32 %s, 2, %s' % (v(t), v(t)))
    p.I('s_mov_b32 %s, 0x%x' % (s(sT), BQ_TABLE))
    p.I('v_lshrrev_b32 %s, %s, %s' % (v(b), v(t), s(sT)) if False else 'v_lshrrev_b32_e64 %s, %s, %s' % (v(b), v(t), s(sT)))
    p.I('v_and_b32 %s, 7, %s' % (v(b), v(b)))
    p.I('v_and_b32 %s, 3, %s' % (v(t), v(n)))
    p.I('v_lshl_add_u32 %s, %s, 2, %s' % (v(b), v(b), v(t)))
    p.I('v_add_u32 %s, 1, %s' % (v(b), v(b)))
    p.I('v_and_b32 %s, 7, %s' % (v(t), v(b)))
    p.I('v_lshrrev_b32 %s, 3, %s' % (v(t2), v(b)))
    p.I('v_mul_u32_u24 %s, 262, %s' % (v(R.aA), v(t)))
    p.I('v_min_u32 %s, 1, %s' % (v(t), v(t)))
    p.I('v_add3_u32 %s, %s, %s, %s' % (v(R.aA), v(R.aA), v(t), v(t2)))
    p.I('v_sub_u32 %s, %s, %s' % (v(R.aA), v(R.aA), v(h)))
    p.I('s_mul_i32 %s, %s, %d' % (s(sT), s(sCH), FCH // 16))
    p.I('s_lshl_b32 %s, %s, 1' % (s(sT2), s(sKS)))
    p.I('s_sub_u32 %s, %s, %s' % (s(sT), s(sT), s(sT2)))
    p.I('s_add_u32 %s, %s, 3' % (s(sT), s(sT)))
    p.I('v_add_lshl_u32 %s, %s, %s, 4' % (v(R.aA), s(sT), v(R.aA)) if False else 'v_add_u32 %s, %s, %s' % (v(R.aA), s(sT), v(R.aA)))
    p.I('v_lshlrev_b32 %s, 4, %s' % (v(R.aA), v(R.aA)))
    p.I('s_mul_i32 %s, %s, %d' % (s(sT), s(sCH), KCH))
    p.I('s_lshl_b32 %s, %s, 5' % (s(sT2), s(sKS)))
    p.I('s_add_u32 %s, %s, %s' % (s(sT), s(sT), s(sT2)))
    p.I('s_add_u32 %s, %s, %d' % (s(sT), s(sT), LK + 80))
    p.I('v_mul_u32_u24 %s, 80, %s' % (v(R.aB), v(n)))
    p.I('v_lshl_add_u32 %s, %s, 4, %s' % (v(R.aB), v(h), v(R.aB)))
    p.I('v_add_u32 %s, %s, %s' % (v(R.aB), s(sT), v(R.aB)))
    uX = b; uY = t2
    p.I('s_lshl_b32 %s, %s, 5' % (s(sT), s(sKS)))
    p.I('v_add_u32 %s, %s, %s' % (v(t), s(sT), v(n)))
    A_ = n
    p.I('v_mov_b32 %s, %s' % (v(A_), v(t)))
    p.I('v_mul_u32_u24 %s, 3, %s' % (v(uX), v(h)))
    p.I('v_sub_u32 %s, 2, %s' % (v(uY), v(h)))
    p.I('s_mul_i32 %s, %s, %d' % (s(sT), s(sCH), KCH))
    p.I('s_add_u32 %s, %s, %d' % (s(sT), s(sT), LK + 32 * 80))
    p.I('v_mul_u32_u24 %s, 80, %s' % (v(t), v(A_)))
    p.I('v_add_u32 %s, %s, %s' % (v(t), s(sT), v(t)))
    p.I('v_lshl_add_u32 %s, %s, 4, %s' % (v(R.lX), v(uX), v(t)))
    p.I('v_lshl_add_u32 %s, %s, 4, %s' % (v(R.lY), v(uY), v(t)))
    p.I('s_lshl_b32 %s, s2, 13' % s(sT))
    p.I('s_lshl_b32 %s, %s, 12' % (s(sT2), s(sCH)))
    p.I('s_add_u32 %s, %s, %s' % (s(sT), s(sT), s(sT2)))
    p.I('v_lshlrev_b32 %s, 6, %s' % (v(t), v(A_)))
    p.I('v_add_u32 %s, %s, %s' % (v(t), s(sT), v(t)))
    p.I('v_lshl_add_u32 %s, %s, 4, %s' % (v(R.gX), v(uX), v(t)))
    p.I('v_lshl_add_u32 %s, %s, 4, %s' % (v(R.gY), v(uY), v(t)))
    p.I('s_lshl_b32 %s, %s, 13' % (s(sT2), s(sKS)))
    p.I('s_add_u32 %s, %s, 0x%x' % (s(sT2), s(sT2), WS_STATS))
    p.I('v_lshlrev_b32 %s, 4, %s' % (v(t), v(l)))
    p.I('v_add_u32 %s, %s, %s' % (v(R.gS), s(sT2), v(t)))
    p.I('v_add_u32 %s, 4096, %s' % (v(R.gS2), v(R.gS)))
    p.I('s_lshl_b32 %s, %s, 11' % (s(sT2), s(sKS)))
    p.I('s_add_u32 %s, %s, %s' % (s(sT), s(sT), s(sT2)))
    p.I('s_add_u32 %s, %s, 0x%x' % (s(sT), s(sT), WS_HT))
    p.I('v_and_b32 %s, 15, %s' % (v(t), v(l)))
    p.I('v_lshlrev_b32 %s, 6, %s' % (v(R.gH), v(t)))
    p.I('v_lshrrev_b32 %s, 4, %s' % (v(t), v(l)))
    p.I('v_lshlrev_b32 %s, 2, %s' % (v(t), v(t)))
    p.I('s_movk_i32 %s, 0x1320' % s(sT2))
    p.I('v_lshrrev_b32_e64 %s, %s, %s' % (v(t), v(t), s(sT2)))
    p.I('v_and_b32 %s, 3, %s' % (v(t), v(t)))
    p.I('v_lshl_add_u32 %s, %s, 4, %s' % (v(R.gH), v(t), v(R.gH)))
    p.I('v_add_u32 %s, %s, %s' % (v(R.gH), s(sT), v(R.gH)))
    p.I('v_lshrrev_b32 %s, 6, v0' % v(t))
    p.I('v_lshlrev_b32 %s, 12, %s' % (v(R.ex), v(t)))
    p.I('v_lshl_add_u32 %s, %s, 4, %s' % (v(R.ex), v(l), v(R.ex)))
    p.I('v_add_u32 %s, %d, %s' % (v(R.ex), LE, v(R.ex)))
    p.I('v_xor_b32 %s, 4096, %s' % (v(R.exr), v(R.ex)))
    p.I('s_lshl_b32 %s, s2, 2' % s(sT))
    p.I('s_lshl_b32 %s, %s, 1' % (s(sT2), s(sCH)))
    p.I('s_add_u32 %s, %s, %s' % (s(sT), s(sT), s(sT2)))
    p.I('v_mov_b32 %s, %s' % (v(R.gD), s(sT)))
    return R

def emit_p1_main(p, va, R, sc='sc1', lab='', st_=None):
    sT, sKV, sX = 72, 73, 74
    p.C('---- P1: loads ----')
    kX = va.get(4, 4); kY = va.get(4, 4); xX = va.get(4, 4); xY = va.get(4, 4); st = va.get(32, 4); dv = va.get()
    p.I('s_mov_b32 %s, 0x%x' % (s(sKV), WS_KVT))
    p.I('s_mov_b32 %s, 0x%x' % (s(sX), WS_XT))
    p.I('buffer_load_dwordx4 %s, %s, %s, %s offen %s' % (v(kX, 4), v(R.gX), s(R_WS, 4), s(sKV), sc))
    p.I('buffer_load_dwordx4 %s, %s, %s, %s offen %s' % (v(kY, 4), v(R.gY), s(R_WS, 4), s(sKV), sc))
    p.I('buffer_load_dwordx4 %s, %s, %s, %s offen %s' % (v(xX, 4), v(R.gX), s(R_WS, 4), s(sX), sc))
    p.I('buffer_load_dwordx4 %s, %s, %s, %s offen %s' % (v(xY, 4), v(R.gY), s(R_WS, 4), s(sX), sc))
    for i in range(4):
        p.I('buffer_load_dwordx4 %s, %s, %s, 0 offen offset:%d %s' % (v(st + 4 * i, 4), v(R.gS), s(R_WS, 4), 1024 * i, sc))
    for i in range(4):
        p.I('buffer_load_dwordx4 %s, %s, %s, 0 offen offset:%d %s' % (v(st + 16 + 4 * i, 4), v(R.gS2), s(R_WS, 4), 1024 * i, sc))
    p.I('buffer_load_ushort %s, %s, %s, 0 offen' % (v(dv), v(R.gD), s(R_SD, 4)))
    p.I('ds_write_b128 %s, %s' % (v(R.lX), v(kX, 4)))
    p.I('ds_write_b128 %s, %s' % (v(R.lY), v(kY, 4)))
    p.I('s_waitcnt lgkmcnt(0)')
    p.I('s_barrier')
    if st_: st_(p, 3)
    acc = [va.get(16, 4), va.get(16, 4)]
    NS = 4
    fr = va.get(16 * NS, 4)
    def reads(d):
        b = fr + 16 * (d % NS)
        return ['ds_read_b128 %s, %s offset:%d' % (v(b, 4), v(R.aA), 64 * d),
                'ds_read_b128 %s, %s offset:%d' % (v(b + 4, 4), v(R.aB), (31 - d) * 80),
                'ds_read_b128 %s, %s offset:%d' % (v(b + 8, 4), v(R.aB), (31 - d) * 80 + 2560),
                'ds_read_b128 %s, %s offset:%d' % (v(b + 12, 4), v(R.aA), 64 * d + 2048)]
    xf = va.get(16, 2); a1 = va.get(16, 2); kf = va.get(16, 2)
    fill = []
    fill.append('v_lshlrev_b32 %s, 16, %s' % (v(dv), v(dv)))
    for u, (xs, ksrc) in enumerate(((xX, kX), (xY, kY))):
        for i in range(4):
            fill.append('v_lshlrev_b32 %s, 16, %s' % (v(xf + 8 * u + 2 * i), v(xs + i)))
            fill.append('v_and_b32 %s, 0xffff0000, %s' % (v(xf + 8 * u + 2 * i + 1), v(xs + i)))
        for i in range(4):
            fill.append('v_lshlrev_b32 %s, 16, %s' % (v(kf + 8 * u + 7 - 2 * i), v(ksrc + i)))
            fill.append('v_and_b32 %s, 0xffff0000, %s' % (v(kf + 8 * u + 6 - 2 * i), v(ksrc + i)))
    for e in range(16):
        fill.append('v_mul_f32 %s, %s, %s' % (v(kf + e), v(dv), v(kf + e)))
    for e in range(16):
        fill.append('v_fma_f32 %s, %s, %s, %s' % (v(a1 + e), v(xf + e), v(st + 2 * e), v(st + 2 * e + 1)))
    for e in range(16):
        fill.append('v_fma_f32 %s, %s, %s, %s' % (v(xf + e), v(a1 + e), v(kf + e), v(xf + e)))
    p.C('---- P1: Toeplitz MFMA loop ----')
    PRE = NS - 1
    for d in range(PRE):
        for r in reads(d): p.I(r)
    fi = 0
    for d in range(32):
        b = fr + 16 * (d % NS)
        nxt = reads(d + PRE) if d + PRE < 32 else []
        c0 = v(acc[0], 16) if d else '0'
        c1 = v(acc[1], 16) if d else '0'
        mf = ['v_mfma_f32_32x32x16_bf16 %s, %s, %s, %s' % (v(acc[0], 16), v(b, 4), v(b + 4, 4), c0),
              'v_mfma_f32_32x32x16_bf16 %s, %s, %s, %s' % (v(acc[1], 16), v(b, 4), v(b + 8, 4), c1),
              'v_mfma_f32_32x32x16_bf16 %s, %s, %s, %s' % (v(acc[1], 16), v(b + 12, 4), v(b + 4, 4), v(acc[1], 16))]
        for k in range(3):
            p.I(mf[k])
            if k < 2:
                for r in nxt[2 * k:2 * k + 2]: p.I(r)
            if d >= 2 and fi < len(fill):
                p.I(fill[fi]); fi += 1
    while fi < len(fill):
        p.I(fill[fi]); fi += 1
    if st_: st_(p, 4)
    p.C('---- P1: exchange + epilogue ----')
    T = fr
    p.I('s_nop 15')
    p.I('s_cmp_eq_u32 %s, 0' % s(R.sKS))
    p.I('s_cbranch_scc0 L_p1_ks1%s' % lab)
    for variant in range(2):
        own, oth = acc[variant], acc[1 - variant]
        if variant == 1:
            p.L('L_p1_ks1%s' % lab)
        for i in range(4):
            p.I('ds_write_b128 %s, %s offset:%d' % (v(R.ex), v(oth + 4 * i, 4), 1024 * i))
        p.I('s_waitcnt lgkmcnt(0)')
        p.I('s_barrier')
        for i in range(4):
            p.I('ds_read_b128 %s, %s offset:%d' % (v(T + 4 * i, 4), v(R.exr), 1024 * i))
        for i in range(8):
            p.I('v_pk_add_f32 %s, %s, %s' % (v(T + 2 * i, 2), v(T + 2 * i, 2), v(own + 2 * i, 2)))
        if variant == 0:
            p.I('s_branch L_p1_join%s' % lab)
    p.L('L_p1_join%s' % lab)
    regX = [0, 1, 2, 3, 12, 13, 14, 15]
    hX = T + 16
    for i in range(4):
        rx = regX[2 * i]
        p.I('v_pk_fma_f32 %s, %s, %s, %s' % (v(hX + 2 * i, 2), v(a1 + 2 * i, 2), v(T + rx, 2), v(xf + 2 * i, 2)))
    for i in range(4):
        p.I('v_pk_fma_f32 %s, %s, %s, %s' % (v(hX + 8 + 2 * i, 2), v(a1 + 8 + 2 * i, 2), v(T + 4 + 2 * i, 2), v(xf + 8 + 2 * i, 2)))
    PX = T + 32; PY = T + 36
    for i in range(4):
        p.I('v_cvt_pk_bf16_f32 %s, %s, %s' % (v(PX + i), v(hX + 2 * i), v(hX + 2 * i + 1)))
    for i in range(4):
        p.I('v_cvt_pk_bf16_f32 %s, %s, %s' % (v(PY + i), v(hX + 8 + 2 * i), v(hX + 8 + 2 * i + 1)))
    for i in range(4):
        p.I('v_permlane16_swap_b32 %s, %s' % (v(PX + i), v(PY + i)))
    p.I('buffer_store_dwordx4 %s, %s, %s, 0 offen %s' % (v(PX, 4), v(R.gH), s(R_WS, 4), sc))
    p.I('buffer_store_dwordx4 %s, %s, %s, 0 offen offset:1024 %s' % (v(PY, 4), v(R.gH), s(R_WS, 4), sc))
```

```python
from common import *
from p0 import f32

HT_HALF = 448 * 128
L_HT = 0
L_STAT = 2 * HT_HALF
P2_LDS_END = L_STAT + 1024
WBUF = 16384

class R2: pass

def emit_p2_ids(p):
    sT = 72
    p.I('s_and_b32 %s, s2, 7' % s(sT))
    p.I('s_lshr_b32 s73, s2, 3')
    p.I('s_mul_i32 s74, s73, 37')
    p.I('s_lshr_b32 s74, s74, 8')
    p.I('s_mul_i32 s75, s74, 7')
    p.I('s_sub_u32 s75, s73, s75')
    p.I('s_lshr_b32 s86, %s, 1' % s(sT))
    p.I('s_lshl_b32 s86, s86, 2')
    p.I('s_add_u32 s86, s86, s74')
    p.I('s_and_b32 s87, %s, 1' % s(sT))
    p.I('s_mul_i32 s87, s87, 7')
    p.I('s_add_u32 s87, s87, s75')
    p.I('v_readfirstlane_b32 s88, v0')
    p.I('s_lshr_b32 s88, s88, 6')

def emit_w_stage(p, va, lbase, NB=4, colsum=None):
    sSO, sM, sT = 72, 73, 74
    p.C('---- stage gate/up weights into AGPRs ----')
    vg = va.get(); vu = va.get(); t = va.get(); t2 = va.get(); b0 = va.get(); b1 = va.get()
    p.I('v_and_b32 %s, 63, v0' % v(t))
    p.I('v_lshrrev_b32 %s, 4, %s' % (v(t2), v(t)))
    p.I('v_mul_u32_u24 %s, 3584, %s' % (v(vg), v(t2)))
    p.I('v_bfe_u32 %s, %s, 1, 3' % (v(vu), v(t)))
    p.I('v_xor_b32 %s, %s, %s' % (v(vu), v(vu), v(t2)))
    p.I('v_lshl_add_u32 %s, %s, 5, %s' % (v(vg), v(vu), v(vg)))
    p.I('v_and_b32 %s, 1, %s' % (v(vu), v(t)))
    p.I('v_lshl_add_u32 %s, %s, 4, %s' % (v(vg), v(vu), v(vg)))
    p.I('v_xor_b32 %s, 128, %s' % (v(vu), v(vg)))
    p.I('v_bfe_u32 %s, %s, 2, 2' % (v(t2), v(t)))
    p.I('v_bfe_u32 %s, %s, 4, 1' % (v(b1), v(t)))
    p.I('v_lshl_add_u32 %s, %s, 2, %s' % (v(b0), v(b1), v(t2)))
    p.I('v_xor_b32 %s, s88, %s' % (v(b0), v(b0)))
    p.I('v_lshlrev_b32 %s, 5, %s' % (v(b0), v(b0)))
    p.I('v_lshl_add_u32 %s, %s, 13, %s' % (v(b0), v(b1), v(b0)))
    p.I('v_lshl_add_u32 %s, %s, 8, %s' % (v(b0), v(t2), v(b0)))
    p.I('v_lshrrev_b32 %s, 5, %s' % (v(t2), v(t)))
    p.I('v_lshl_add_u32 %s, %s, 11, %s' % (v(b0), v(t2), v(b0)))
    p.I('v_and_b32 %s, 3, %s' % (v(t2), v(t)))
    p.I('v_lshl_add_u32 %s, %s, 3, %s' % (v(b0), v(t2), v(b0)))
    p.I('v_add_u32 %s, %d, %s' % (v(b0), lbase, v(b0)))
    p.I('v_xor_b32 %s, 128, %s' % (v(b1), v(b0)))
    assert lbase % 256 == 0 and NB * WBUF <= 65536 + 0
    sB, sMB = 75, 76
    p.I('s_mul_i32 %s, s88, %d' % (s(sB), 8 * 3584))
    p.I('s_lshl_b32 %s, s87, 8' % s(sT))
    p.I('s_add_u32 %s, %s, %s' % (s(sB), s(sB), s(sT)))
    p.I('s_lshl_b32 %s, s88, 11' % s(sMB))
    p.I('s_add_u32 %s, %s, %d' % (s(sMB), s(sMB), lbase))
    def dma(st):
        buf = st % NB
        for up in range(2):
            for i in range(2):
                p.I('s_add_u32 m0, %s, %d' % (s(sMB), buf * WBUF + up * 8192 + i * 1024))
                p.I('s_add_u32 %s, %s, %d' % (s(sSO), s(sB), (32 * st + 4 * i) * 3584))
                p.I('buffer_load_dwordx4 %s, %s, %s offen lds' % (v(vu if up else vg), s((R_WU if up else R_WG), 4), s(sSO)), tag='w%d' % st)
    def reads(st):
        buf = st % NB
        for kk in range(2):
            for pp in range(2):
                k = 2 * st + kk
                for rho in range(2):
                    p.I('ds_read_b64_tr_b16 %s, %s offset:%d' % (a((pp * 28 + k) * 4 + 2 * rho, 2), v(b1 if pp else b0), buf * WBUF + (16 * kk + 4 * rho) * 256))
    NST = 14
    for st in range(NB - 1): dma(st)
    for st in range(NST):
        p.waitvm('w%d' % st)
        p.I('s_waitcnt lgkmcnt(0)')
        p.I('s_barrier')
        if st + NB - 1 < NST: dma(st + NB - 1)
        reads(st)
        if colsum and st > 0:
            cs, ones = colsum
            for kk in range(2):
                for pp in range(2):
                    k = 2 * (st - 1) + kk
                    p.I('v_mfma_f32_32x32x16_bf16 %s, %s, %s, %s' % (a(cs[pp], 16), a((pp * 28 + k) * 4, 4), v(ones, 4), a(cs[pp], 16) if k else '0'))
    if colsum:
        cs, ones = colsum
        for kk in range(2):
            for pp in range(2):
                k = 2 * (NST - 1) + kk
                p.I('v_mfma_f32_32x32x16_bf16 %s, %s, %s, %s' % (a(cs[pp], 16), a((pp * 28 + k) * 4, 4), v(ones, 4), a(cs[pp], 16)))
    p.I('s_waitcnt lgkmcnt(0)')

CS_A = [224, 240]
def emit_cs_copy(p, va):
    cs = [va.get(16, 4), va.get(16, 4)]
    for pp in range(2):
        for i in range(16):
            p.I('v_accvgpr_read_b32 %s, %s' % (v(cs[pp] + i), a(CS_A[pp] + i)))
    return cs

def emit_ht_dma(p, va, sc='sc1'):
    sSO, sT, sB = 72, 73, 74
    p.C('---- hT tile -> LDS ----')
    vo = va.get(); t = va.get(); t2 = va.get()
    p.I('v_and_b32 %s, 63, v0' % v(t))
    p.I('v_lshrrev_b32 %s, 3, %s' % (v(t2), v(t)))
    p.I('v_lshlrev_b32 %s, 12, %s' % (v(vo), v(t2)))
    p.I('v_bfe_u32 %s, %s, 2, 1' % (v(t2), v(t)))
    p.I('v_lshrrev_b32 %s, 4, %s' % (v(t), v(t)))
    p.I('v_xor_b32 %s, %s, %s' % (v(t2), v(t2), v(t)))
    p.I('v_and_b32 %s, 1, %s' % (v(t2), v(t2)))
    p.I('v_lshl_add_u32 %s, %s, 6, %s' % (v(vo), v(t2), v(vo)))
    p.I('v_and_b32 %s, 3, v0' % v(t2))
    p.I('v_lshl_add_u32 %s, %s, 4, %s' % (v(vo), v(t2), v(vo)))
    p.I('s_lshl_b32 %s, s86, 8' % s(sB))
    p.I('s_lshl_b32 %s, s88, 15' % s(sT))
    p.I('s_add_u32 %s, %s, %s' % (s(sB), s(sB), s(sT)))
    p.I('s_add_u32 %s, %s, 0x%x' % (s(sB), s(sB), WS_HT))
    p.I('s_lshl_b32 %s, s88, 10' % s(sT))
    for half in range(2):
        for i in range(14):
            p.I('s_add_u32 m0, %s, %d' % (s(sT), L_HT + half * HT_HALF + i * 4096))
            p.I('s_add_u32 %s, %s, %d' % (s(sSO), s(sB), half * 128 + i * 32 * 4096))
            p.I('buffer_load_dwordx4 %s, %s, %s offen %s lds' % (v(vo), s(R_WS, 4), s(sSO), sc), tag='ht%d' % half)

def emit_b_addr(p, va):
    R = R2()
    R.b = [[va.get(), va.get()], [va.get(), va.get()]]
    t = va.get(); t2 = va.get()
    b = R.b[0][0]
    p.I('v_and_b32 %s, 63, v0' % v(t))
    p.I('v_bfe_u32 %s, %s, 2, 2' % (v(t2), v(t)))
    p.I('v_lshlrev_b32 %s, 7, %s' % (v(b), v(t2)))
    p.I('v_lshrrev_b32 %s, 5, %s' % (v(t2), v(t)))
    p.I('v_lshl_add_u32 %s, %s, 10, %s' % (v(b), v(t2), v(b)))
    p.I('v_bfe_u32 %s, %s, 3, 1' % (v(t2), v(t)))
    p.I('v_lshl_add_u32 %s, %s, 6, %s' % (v(b), v(t2), v(b)))
    p.I('v_bfe_u32 %s, %s, 4, 1' % (v(t2), v(t)))
    p.I('v_lshl_add_u32 %s, %s, 5, %s' % (v(b), v(t2), v(b)))
    p.I('v_and_b32 %s, 3, %s' % (v(t2), v(t)))
    p.I('v_lshl_add_u32 %s, %s, 3, %s' % (v(b), v(t2), v(b)))
    if L_HT: p.I('v_add_u32 %s, %d, %s' % (v(b), L_HT, v(b)))
    p.I('v_xor_b32 %s, 64, %s' % (v(R.b[0][1]), v(b)))
    p.I('v_add_u32 %s, %d, %s' % (v(R.b[1][0]), HT_HALF, v(b)))
    p.I('v_add_u32 %s, %d, %s' % (v(R.b[1][1]), HT_HALF, v(R.b[0][1])))
    return R

def bread(dst, R, sig, k):
    base = R.b[sig >> 1][sig & 1]
    return ['ds_read_b64_tr_b16 %s, %s offset:%d' % (v(dst + 2 * rho, 2), v(base), (16 * k + 4 * rho) * 128) for rho in range(2)]

def emit_stats(p, va, R):
    p.C('---- LN2 stats ----')
    R.m = [va.get() for _ in range(4)]; R.r = [va.get() for _ in range(4)]; R.al = [va.get() for _ in range(4)]
    mark = va.n
    sm = va.get(2, 2); sq = sm + 1; ones = va.get(); base = va.get(); t = va.get(); t2 = va.get(); fr = va.get(16, 4); sa = va.get()
    p.I('s_and_b32 s72, s88, 1')
    p.I('s_lshl_b32 s72, s72, 6')
    p.I('v_xor_b32 %s, s72, %s' % (v(base), v(R.b[0][0])))
    p.I('s_lshr_b32 s72, s88, 1')
    p.I('s_mul_i32 s72, s72, %d' % HT_HALF)
    p.I('v_add_u32 %s, s72, %s' % (v(base), v(base)))
    p.I('v_mov_b32 %s, 0x3f803f80' % v(ones))
    p.I('v_mov_b32 %s, 0' % v(sm))
    p.I('v_mov_b32 %s, 0' % v(sq))
    def rd(k):
        for rho in range(2):
            p.I('ds_read_b64_tr_b16 %s, %s offset:%d' % (v(fr + 4 * (k % 4) + 2 * rho, 2), v(base), (16 * k + 4 * rho) * 128))
    for k in range(3): rd(k)
    for k in range(28):
        if k + 3 < 28: rd(k + 3)
        for i in range(4):
            p.I('v_dot2_f32_bf16 %s, %s, %s, %s' % (v(sm), v(fr + 4 * (k % 4) + i), v(ones), v(sm)))
            p.I('v_dot2_f32_bf16 %s, %s, %s, %s' % (v(sq), v(fr + 4 * (k % 4) + i), v(fr + 4 * (k % 4) + i), v(sq)))
    for x in (sm, sq):
        p.I('v_mov_b32 %s, %s' % (v(t), v(x)))
        p.I('v_permlane32_swap_b32 %s, %s' % (v(t), v(x)))
        p.I('v_add_f32 %s, %s, %s' % (v(x), v(x), v(t)))
    p.I('v_mul_f32 %s, 0x%08x, %s' % (v(sm), f32(1.0 / D), v(sm)))
    p.I('v_mul_f32 %s, 0x%08x, %s' % (v(sq), f32(1.0 / D), v(sq)))
    p.I('v_fma_f32 %s, -%s, %s, %s' % (v(sq), v(sm), v(sm), v(sq)))
    p.I('v_max_f32 %s, 0, %s' % (v(sq), v(sq)))
    p.I('v_add_f32 %s, 0x%08x, %s' % (v(sq), f32(1e-5), v(sq)))
    p.I('v_rsq_f32 %s, %s' % (v(sq), v(sq)))
    p.I('v_and_b32 %s, 31, v0' % v(t))
    p.I('v_lshlrev_b32 %s, 3, %s' % (v(t), v(t)))
    p.I('s_lshl_b32 s72, s88, 8')
    p.I('v_add_u32 %s, s72, %s' % (v(sa), v(t)))
    p.I('v_add_u32 %s, %d, %s' % (v(sa), L_STAT, v(sa)))
    p.I('ds_write_b64 %s, %s' % (v(sa), v(sm, 2)))
    p.I('v_add_u32 %s, %d, %s' % (v(t), L_STAT, v(t)))
    p.I('s_waitcnt lgkmcnt(0)')
    p.I('s_barrier')
    for sig in range(4):
        p.I('ds_read_b64 %s, %s offset:%d' % (v(fr + 2 * sig, 2), v(t), 256 * sig))
    for sig in range(4):
        p.I('v_mov_b32 %s, %s' % (v(R.m[sig]), v(fr + 2 * sig)))
        p.I('v_mov_b32 %s, %s' % (v(R.r[sig]), v(fr + 2 * sig + 1)))
        p.I('v_mul_f32 %s, 0x%08x, %s' % (v(R.al[sig]), f32(-1.4426950408889634), v(fr + 2 * sig + 1)))
    va.n = mark

def epilogue(acc, cs, R, sig, pp, tmp, gst, soff, sc):
    L = []
    m, r, al = R.m[sig], R.r[sig], R.al[sig]
    x = tmp; o = tmp + 8; pk = tmp + 16
    for j in range(8):
        L.append('v_fma_f32 %s, -%s, %s, %s' % (v(x + j), v(m), v(cs + j), v(acc + j)))
    for j in range(8):
        L.append('v_mul_f32 %s, %s, %s' % (v(x + j), v(al), v(x + j)))
    for j in range(8):
        L.append('v_fma_f32 %s, -%s, %s, %s' % (v(o + j), v(m), v(cs + 8 + j), v(acc + 8 + j)))
    for j in range(8):
        L.append('v_exp_f32 %s, %s' % (v(x + j), v(x + j)))
    for j in range(8):
        L.append('v_mul_f32 %s, %s, %s' % (v(o + j), v(r), v(o + j)))
    for j in range(8):
        L.append('v_add_f32 %s, 1.0, %s' % (v(x + j), v(x + j)))
    for j in range(8):
        L.append('v_rcp_f32 %s, %s' % (v(x + j), v(x + j)))
    for j in range(8):
        L.append('v_mul_f32 %s, %s, %s' % (v(o + j), v(x + j), v(o + j)))
    for i in range(4):
        L.append('v_cvt_pk_bf16_f32 %s, %s, %s' % (v(pk + i), v(o + 2 * i), v(o + 2 * i + 1)))
    L.append('s_add_u32 %s, %s, %d' % (s(soff), s(89), (sig * 112 + 4 * pp) * 1024))
    L.append('buffer_store_dwordx4 %s, %s, %s, %s offen %s' % (v(pk, 4), v(gst), s(R_WS, 4), s(soff), sc))
    return L

def emit_p2_main(p, va, R, cs, sc='sc1', st_=None):
    p.C('---- P2 main ----')
    acc = [[va.get(16, 4), va.get(16, 4)], [va.get(16, 4), va.get(16, 4)]]
    NF = 4
    fr = va.get(4 * NF, 4)
    tmp = va.get(20, 4); tmp2 = va.get(20, 4); gst = va.get()
    p.I('s_mul_i32 s89, s86, %d' % (4 * 112))
    p.I('s_lshl_b32 s72, s87, 3')
    p.I('s_add_u32 s89, s89, s72')
    p.I('s_add_u32 s89, s89, s88')
    p.I('s_lshl_b32 s89, s89, 10')
    p.I('s_add_u32 s89, s89, 0x%x' % WS_HH)
    p.I('v_and_b32 %s, 63, v0' % v(gst))
    p.I('v_lshlrev_b32 %s, 4, %s' % (v(gst), v(gst)))
    seq = [(sig, k) for sig in range(4) for k in range(28)]
    PRE = NF - 1
    def rd(i):
        sig, k = seq[i]
        return bread(fr + 4 * (i % NF), R, sig, k)
    for i in range(PRE):
        for x in rd(i): p.I(x)
    pend = []
    for i, (sig, k) in enumerate(seq):
        A = acc[sig & 1]
        if k == 0 and sig > 0:
            pend = epilogue(acc[(sig - 1) & 1][0], cs[0], R, sig - 1, 0, tmp, gst, 72, sc) + epilogue(acc[(sig - 1) & 1][1], cs[1], R, sig - 1, 1, tmp2, gst, 73, sc)
            pi = 0
        b = fr + 4 * (i % NF)
        nxt = rd(i + PRE) if i + PRE < len(seq) else []
        for pp in range(2):
            p.I('v_mfma_f32_32x32x16_bf16 %s, %s, %s, %s' % (v(A[pp], 16), a((pp * 28 + k) * 4, 4), v(b, 4), v(A[pp], 16) if k else '0'))
            if nxt: p.I(nxt[pp])
            if pend and k >= 1:
                n = 3
                for x in pend[pi:pi + n]: p.I(x)
                pi += n
        if k == 27 and pend:
            for x in pend[pi:]: p.I(x)
            pend = []
    if st_: st_(p, 5)
    for x in epilogue(acc[1][0], cs[0], R, 3, 0, tmp, gst, 72, sc) + epilogue(acc[1][1], cs[1], R, 3, 1, tmp2, gst, 73, sc): p.I(x)
```

```python
import sys
from common import *
import p0, p1, p2, p3

FLAG_A = WS_FLAGS
FLAG_B = WS_FLAGS + 0x8000
FLAG_C = WS_FLAGS + 0x10000
S_TAG = 93
SPIN_MAX = 400000

def flag_regs(p, va):
    vflag = va.get(); vpoll = va.get(); t = va.get()
    p.I('s_lshr_b32 s72, s2, 3')
    p.I('s_lshl_b32 s72, s72, 7')
    p.I('s_and_b32 s73, s2, 7')
    p.I('s_lshl_b32 s74, s73, 2')
    p.I('s_add_u32 s72, s72, s74')
    p.I('v_lshlrev_b32 %s, 12, v0' % v(vflag))
    p.I('v_add_u32 %s, s72, %s' % (v(vflag), v(vflag)))
    p.I('v_mov_b32 %s, 0x%x' % (v(t), OOB))
    p.I('v_cmp_gt_u32 vcc, 8, v0')
    p.I('v_cndmask_b32 %s, %s, %s, vcc' % (v(vflag), v(t), v(vflag)))
    p.I('v_and_b32 %s, 63, v0' % v(t))
    p.I('v_min_u32 %s, 55, %s' % (v(t), v(t)))
    p.I('v_lshrrev_b32 %s, 1, %s' % (v(vpoll), v(t)))
    p.I('v_lshlrev_b32 %s, 7, %s' % (v(vpoll), v(vpoll)))
    p.I('v_and_b32 %s, 1, %s' % (v(t), v(t)))
    p.I('v_lshl_add_u32 %s, %s, 4, %s' % (v(vpoll), v(t), v(vpoll)))
    p.I('s_lshl_b32 s73, s73, 12')
    p.I('v_add_u32 %s, s73, %s' % (v(vpoll), v(vpoll)))
    return vflag, vpoll

def signal(p, voff, base, tmp):
    p.I('s_waitcnt vmcnt(0)')
    p.I('s_barrier')
    p.I('s_mov_b32 s100, 0x%x' % base)
    p.I('v_mov_b32 %s, s%d' % (v(tmp), S_TAG))
    p.I('buffer_store_dword %s, %s, %s, s100 offen sc1' % (v(tmp), v(voff), s(R_WS, 4)))

def poll(p, name, voff, base, tmp, wide=True):
    p.I('s_cmp_lg_u32 s88, 0')
    p.I('s_cbranch_scc1 L_%s_done' % name)
    p.I('s_mov_b32 s100, 0x%x' % base)
    p.I('s_mov_b32 s101, 0')
    p.I('s_waitcnt vmcnt(0)')
    p.L('L_%s_loop' % name)
    if wide:
        p.I('buffer_load_dwordx4 %s, %s, %s, s100 offen sc1' % (v(tmp, 4), v(voff), s(R_WS, 4)))
        for i in range(4):
            p.I('v_xor_b32 %s, s%d, %s' % (v(tmp + i), S_TAG, v(tmp + i)))
        p.I('v_or3_b32 %s, %s, %s, %s' % (v(tmp), v(tmp), v(tmp + 1), v(tmp + 2)))
        p.I('v_or_b32 %s, %s, %s' % (v(tmp), v(tmp), v(tmp + 3)))
    else:
        p.I('buffer_load_dword %s, %s, %s, s100 offen sc1' % (v(tmp), v(voff), s(R_WS, 4)))
        p.I('v_xor_b32 %s, s%d, %s' % (v(tmp), S_TAG, v(tmp)))
    p.I('v_cmp_ne_u32 vcc, 0, %s' % v(tmp))
    p.I('s_add_u32 s101, s101, 1')
    p.I('s_cmp_gt_u32 s101, %d' % SPIN_MAX)
    p.I('s_cbranch_scc1 L_%s_done' % name)
    p.I('s_cbranch_vccnz L_%s_loop' % name)
    p.L('L_%s_done' % name)
    p.I('s_barrier')

def build(stamps=False, fname=None, opts=None):
    o = dict(prefetch_code=True)
    o.update(opts or {})
    ST = stamp if stamps else (lambda p, i: None)
    p = Prog(); name = KNAME + '_kernel'; p.name = name
    p.I('s_cmp_ge_u32 s2, %d' % NWG)
    p.I('s_cbranch_scc1 L_end')
    if stamps: stamp_take(p)
    load_kernargs(p)
    p.I('s_waitcnt lgkmcnt(0)')
    srd(p, R_Q, P_Q, S * D * 2); srd(p, R_K, P_K, S * D * 2); srd(p, R_V, P_V, S * D * 2); srd(p, R_WS, P_WS, WS_END)
    srd(p, R_SH, P_SH, D * 8); srd(p, R_SD, P_SD, D * 2)
    srd(p, R_WG, P_WG, D * F * 2); srd(p, R_WU, P_WU, D * F * 2); srd(p, R_WD, P_WD, D * F * 2); srd(p, R_OUT, P_OUT, S * D * 2)
    if stamps:
        stamp_init(p, 0); stamp_put(p, 0); stamp(p, 1)
    LIM = 250 if stamps else 256
    glob = Alloc(1, LIM)
    vflag, vpoll = flag_regs(p, glob)
    vepoch = glob.get(); vtmp = glob.get(4, 4); vflagC = glob.get(); vpollC = glob.get()
    p.I('v_mov_b32 %s, 0' % v(vtmp))
    p.I('buffer_load_dword %s, %s, %s, 0 offen sc1' % (v(vepoch), v(vtmp), s(R_WS, 4)))
    p2.emit_p2_ids(p)
    p3.emit_p3_ids(p)
    base = glob.n
    va = Alloc(base, LIM)
    p0.emit_p0(p, va)
    ST(p, 2)
    p.I('v_readfirstlane_b32 s%d, %s' % (S_TAG, v(vepoch)))
    p.I('s_add_u32 s%d, s%d, 0x9e3779b9' % (S_TAG, S_TAG))
    p.I('s_lshl_b32 s72, s86, 7')
    p.I('s_lshl_b32 s73, s87, 2')
    p.I('s_add_u32 s72, s72, s73')
    p.I('v_mov_b32 %s, 0x%x' % (v(vtmp), OOB))
    p.I('v_mov_b32 %s, s72' % v(vflagC))
    p.I('v_cmp_eq_u32 vcc, 0, v0')
    p.I('v_cndmask_b32 %s, %s, %s, vcc' % (v(vflagC), v(vtmp), v(vflagC)))
    p.I('s_lshr_b32 s72, s90, 1')
    p.I('s_lshl_b32 s72, s72, 7')
    p.I('v_and_b32 %s, 63, v0' % v(vtmp))
    p.I('v_min_u32 %s, 13, %s' % (v(vtmp), v(vtmp)))
    p.I('v_lshlrev_b32 %s, 2, %s' % (v(vtmp), v(vtmp)))
    p.I('v_add_u32 %s, s72, %s' % (v(vpollC), v(vtmp)))
    va = Alloc(base, LIM)
    R1 = p1.emit_p1_addr(p, va)
    mark1 = va.n
    p1.emit_filter_prep(p, va)
    signal(p, vflag, FLAG_A, vtmp)
    ST(p, 3)
    va.n = mark1
    ones = va.get(4, 4)
    for i in range(4): p.I('v_mov_b32 %s, 0x3f803f80' % v(ones + i))
    p2.emit_w_stage(p, va, p1.P1_LDS_END, 3, colsum=(p2.CS_A, ones))
    ST(p, 4)
    poll(p, 'A', vpoll, FLAG_A, vtmp)
    ST(p, 5)
    va.n = mark1
    p1.emit_p1_main(p, va, R1, st_=(lambda p, i: stamp(p, i + 3)) if stamps else None)
    signal(p, vflag, FLAG_B, vtmp)
    ST(p, 8)
    poll(p, 'B', vpoll, FLAG_B, vtmp)
    ST(p, 9)
    p.I('s_cmp_lg_u32 s2, 0')
    p.I('s_cselect_b32 s72, 0x%x, 0' % OOB)
    p.I('v_mov_b32 %s, s72' % v(vtmp))
    p.I('v_mov_b32 %s, s%d' % (v(vtmp + 1), S_TAG))
    p.I('v_cmp_eq_u32 vcc, 0, v0')
    p.I('v_mov_b32 %s, 0x%x' % (v(vtmp + 2), OOB))
    p.I('v_cndmask_b32 %s, %s, %s, vcc' % (v(vtmp), v(vtmp + 2), v(vtmp)))
    p.I('buffer_store_dword %s, %s, %s, 0 offen sc1' % (v(vtmp + 1), v(vtmp), s(R_WS, 4)))
    va = Alloc(base, LIM)
    p2.emit_ht_dma(p, va)
    R2 = p2.emit_b_addr(p, va)
    cs = p2.emit_cs_copy(p, va)
    p.I('s_waitcnt vmcnt(0)')
    p.I('s_barrier')
    ST(p, 10)
    p2.emit_stats(p, va, R2)
    ST(p, 11)
    p2.emit_p2_main(p, va, R2, cs, st_=(lambda p, i: stamp(p, 12)) if stamps else None)
    signal(p, vflagC, FLAG_C, vtmp)
    ST(p, 13)
    va = Alloc(base, LIM)
    p3.emit_wd_stage(p, va, 0, 8)
    ST(p, 14)
    poll(p, 'C', vpollC, FLAG_C, vtmp, wide=False)
    ST(p, 15)
    va = Alloc(base, LIM)
    p3.emit_p3_main(p, va, 0, 8192, st_=(lambda p, i: stamp(p, 16)) if stamps else None)
    ST(p, 17)
    p.I('s_waitcnt vmcnt(0)')
    if stamps:
        stamp(p, 18)
        p.I('s_waitcnt vmcnt(0)')
    p.L('L_end')
    p.I('s_endpgm')
    body, ins = finish(p)
    t, kd = kernel_text(name, body)
    txt = HEADER % ('; @launch grid=(%d,1,1) block=(256,1,1) lds=%d' % (NWG, 163840)) + t + '.section .rodata,"a"\n.p2align 6\n' + kd
    n = sum(1 for i in ins if i.is_real())
    print('%s: %d instructions, %d nops' % (fname, n, sum(1 for i in ins if i.op == 's_nop')))
    open(fname, 'w').write(txt)

NAMES = {0: 'start', 1: 'kernarg', 2: 'P0 stores issued', 3: 'flag A sent', 4: 'W staged', 5: 'A seen', 6: 'P1 kv in LDS', 7: 'P1 mfma done',
         8: 'flag B sent', 9: 'B seen', 10: 'hT landed', 11: 'stats done', 12: 'P2 mfma done', 13: 'flag C sent', 14: 'Wd staged', 15: 'C seen',
         16: 'P3 mfma done', 17: 'out stores issued', 18: 'end'}
if __name__ == '__main__':
    build(False, 'ps.s')
    build(True, 'ps_st.s')
```

```python
import re

REG_RE = re.compile(r'^(-|\|)?(-)?([vas])(\d+)\|?$')
RNG_RE = re.compile(r'^(-)?([vas])\[(\d+):(\d+)\]$')

def regs_of(tok):
    tok = tok.strip()
    tok = tok.replace('abs(', '').replace(')', '').replace('|', '')
    if tok.startswith('-'):
        tok = tok[1:]
    m = re.match(r'^([vas])(\d+)$', tok)
    if m:
        return [(m.group(1), int(m.group(2)))]
    m = re.match(r'^([vas])\[(\d+):(\d+)\]$', tok)
    if m:
        return [(m.group(1), i) for i in range(int(m.group(2)), int(m.group(3)) + 1)]
    if tok == 'vcc':
        return [('x', 'vcc')]
    if tok in ('vcc_lo', 'vcc_hi'):
        return [('x', 'vcc')]
    if tok in ('exec', 'exec_lo', 'exec_hi'):
        return [('x', 'exec')]
    if tok == 'm0':
        return [('x', 'm0')]
    return []

def split_ops(s):
    out, depth, cur = [], 0, ''
    for ch in s:
        if ch in '[(':
            depth += 1
        if ch in '])':
            depth -= 1
        if ch == ',' and depth == 0:
            out.append(cur.strip()); cur = ''
        else:
            cur += ch
    if cur.strip():
        out.append(cur.strip())
    return out

TRANS = ('v_exp_f32', 'v_log_f32', 'v_rcp_f32', 'v_rsq_f32', 'v_sqrt_f32', 'v_sin_f32', 'v_cos_f32', 'v_rcp_iflag_f32')

class Ins:
    __slots__ = ('text', 'op', 'kind', 'defs', 'uses', 'tag', 'mods', 'srcC', 'srcAB', 'dpp', 'wide_store_data', 'comment')
    def __init__(self, text, tag=None):
        self.text = text
        self.tag = tag
        self.defs = []
        self.uses = []
        self.srcC = []
        self.srcAB = []
        self.dpp = False
        self.wide_store_data = []
        t = text.strip()
        if t.endswith(':'):
            self.kind = 'label'; self.op = t[:-1]; return
        if t.startswith(';') or t == '' or t.startswith('.'):
            self.kind = 'pseudo'; self.op = t; return
        if t.startswith('@'):
            self.kind = 'directive'; self.op = t; return
        parts = t.split(None, 1)
        op = parts[0]
        self.op = op
        rest = parts[1] if len(parts) > 1 else ''
        ops = split_ops(rest)
        mods = ''
        if ops:
            lp = ops[-1].split(None, 1)
            ops[-1] = lp[0]
            mods = lp[1] if len(lp) > 1 else ''
        self.mods = mods
        R = regs_of
        if op.startswith('v_mfma'):
            self.kind = 'mfma'
            self.defs = R(ops[0]); self.srcAB = R(ops[1]) + R(ops[2]); self.srcC = R(ops[3])
            self.uses = self.srcAB + self.srcC
        elif op.startswith('v_'):
            self.kind = 'valu'
            base = op.replace('_e32', '').replace('_e64', '').replace('_dpp', '').replace('_sdwa', '')
            self.dpp = op.endswith('_dpp') or 'row_' in mods or 'quad_perm' in mods or 'wave_' in mods
            if base.startswith('v_cmp'):
                self.defs = R(ops[0]); self.uses = sum((R(o) for o in ops[1:]), [])
                if base.startswith('v_cmpx'):
                    self.defs += [('x', 'exec')]
            elif base.startswith('v_permlane') and 'swap' in base:
                self.defs = R(ops[0]) + R(ops[1]); self.uses = list(self.defs)
            elif base in ('v_add_co_u32', 'v_sub_co_u32', 'v_subrev_co_u32'):
                self.defs = R(ops[0]) + R(ops[1]); self.uses = sum((R(o) for o in ops[2:]), [])
            elif base in ('v_addc_co_u32', 'v_subb_co_u32'):
                self.defs = R(ops[0]) + R(ops[1]); self.uses = sum((R(o) for o in ops[2:]), [])
            elif base in ('v_fmac_f32', 'v_dot2c_f32_bf16', 'v_writelane_b32', 'v_pk_fmac_f16'):
                self.defs = R(ops[0]); self.uses = R(ops[0]) + sum((R(o) for o in ops[1:]), [])
            elif base == 'v_nop':
                pass
            else:
                self.defs = R(ops[0]); self.uses = sum((R(o) for o in ops[1:]), [])
                if self.dpp:
                    self.uses += R(ops[0])
                if base == 'v_cndmask_b32' and len(ops) == 3:
                    self.uses += [('x', 'vcc')]
            self.uses += [('x', 'exec')]
        elif op.startswith('ds_'):
            self.kind = 'ds'
            if op.startswith('ds_read') or op.startswith('ds_bpermute') or op.startswith('ds_permute') or op.startswith('ds_swizzle'):
                self.defs = R(ops[0]); self.uses = sum((R(o) for o in ops[1:]), [])
            else:
                self.uses = sum((R(o) for o in ops), [])
        elif op.startswith('buffer_') or op.startswith('global_'):
            self.kind = 'vmem'
            is_lds = (' lds' in (' ' + mods)) or op.startswith('global_load_lds')
            if op.startswith('buffer_load'):
                if is_lds:
                    self.uses = sum((R(o) for o in ops), []) + [('x', 'm0')]
                else:
                    self.defs = R(ops[0]); self.uses = sum((R(o) for o in ops[1:]), [])
                    if 'd16' in op:
                        self.uses += R(ops[0])
            elif op.startswith('buffer_store'):
                self.uses = sum((R(o) for o in ops), [])
                if 'x3' in op or 'x4' in op:
                    self.wide_store_data = R(ops[0])
            elif op.startswith('buffer_atomic'):
                self.uses = sum((R(o) for o in ops), [])
                if 'sc0' in mods:
                    self.defs = R(ops[0])
            elif op.startswith('global_load_lds'):
                self.uses = sum((R(o) for o in ops), []) + [('x', 'm0')]
            elif op.startswith('global_load'):
                self.defs = R(ops[0]); self.uses = sum((R(o) for o in ops[1:]), [])
            elif op.startswith('global_store'):
                self.uses = sum((R(o) for o in ops), [])
                if 'x3' in op or 'x4' in op:
                    self.wide_store_data = R(ops[1])
            elif op.startswith('global_atomic'):
                self.uses = sum((R(o) for o in ops), [])
            elif op.startswith('buffer_wbl2') or op.startswith('buffer_inv'):
                pass
            else:
                raise ValueError('vmem? ' + text)
        elif op.startswith('s_load') or op.startswith('s_buffer_load') or op in ('s_memtime', 's_memrealtime'):
            self.kind = 'smem'
            self.defs = R(ops[0]); self.uses = sum((R(o) for o in ops[1:]), [])
        elif op.startswith('s_'):
            if op in ('s_waitcnt', 's_nop', 's_barrier', 's_endpgm', 's_sleep', 's_setprio'):
                self.kind = 'sctl'
            elif op.startswith('s_cbranch') or op == 's_branch':
                self.kind = 'branch'
            else:
                self.kind = 'salu'
                if op.startswith('s_cmp') or op.startswith('s_bitcmp'):
                    self.uses = sum((R(o) for o in ops), [])
                elif 'saveexec' in op:
                    self.defs = R(ops[0]) + [('x', 'exec')]; self.uses = sum((R(o) for o in ops[1:]), []) + [('x', 'exec')]
                elif op.startswith('s_getreg') or op == 's_getpc_b64':
                    self.defs = R(ops[0])
                else:
                    self.defs = R(ops[0]); self.uses = sum((R(o) for o in ops[1:]), [])
                    if op in ('s_addk_i32', 's_mulk_i32'):
                        self.uses += R(ops[0])
        else:
            raise ValueError('unknown instruction ' + text)

    def is_real(self):
        return self.kind not in ('label', 'pseudo', 'directive')


class Prog:
    def __init__(self):
        self.ins = []
    def I(self, text, tag=None):
        for line in text.split('\n'):
            line = line.strip()
            if line:
                self.ins.append(Ins(line, tag))
    def L(self, name):
        self.ins.append(Ins(name + ':'))
    def C(self, text):
        self.ins.append(Ins('; ' + text))
    def waitvm(self, tag):
        self.ins.append(Ins('@waitvm ' + tag))
    def waitds(self, tag):
        self.ins.append(Ins('@waitds ' + tag))
    def reset(self, vm='drained', ds='drained'):
        self.ins.append(Ins('@reset'))
    def push(self):
        self.ins.append(Ins('@push'))
    def pop(self):
        self.ins.append(Ins('@pop'))
    def keep(self):
        self.ins.append(Ins('@keep'))
    def extend(self, other):
        self.ins.extend(other.ins)


def insert_waits(ins):
    out = []
    vm = []
    ds = []
    smem = set()
    keep = False
    stack = []
    def wait(vmn=None, lgn=None):
        parts = []
        if vmn is not None:
            parts.append('vmcnt(%d)' % min(vmn, 63))
        if lgn is not None:
            parts.append('lgkmcnt(%d)' % min(lgn, 15))
        out.append(Ins('s_waitcnt ' + ' '.join(parts)))
    for i in ins:
        if i.kind == 'directive':
            p = i.op.split()
            if p[0] == '@waitvm':
                idx = max((k for k, e in enumerate(vm) if e[1] == p[1]), default=-1)
                if idx >= 0:
                    n = len(vm) - 1 - idx
                    wait(vmn=n)
                    del vm[:len(vm) - min(n, 63)]
            elif p[0] == '@waitds':
                idx = max((k for k, e in enumerate(ds) if e[1] == p[1]), default=-1)
                if idx >= 0:
                    n = len(ds) - 1 - idx
                    wait(lgn=n)
                    del ds[:len(ds) - min(n, 15)]
            elif p[0] == '@reset':
                vm = []; ds = []; smem = set()
            elif p[0] == '@keep':
                keep = True
            elif p[0] == '@push':
                stack.append((list(vm), list(ds), set(smem)))
            elif p[0] == '@pop':
                vm, ds, smem = stack.pop()
            continue
        if i.kind == 'label' or i.kind == 'branch':
            pend = [e for e in vm + ds if e[0]]
            if (pend or smem) and not keep:
                raise RuntimeError('register loads outstanding at %s: %s' % (i.text, pend[:3]))
            keep = False
        if not i.is_real():
            out.append(i)
            continue
        if i.op == 's_waitcnt':
            m = re.search(r'vmcnt\((\d+)\)', i.text)
            if m:
                n = int(m.group(1))
                if len(vm) > n: del vm[:len(vm) - n]
            m = re.search(r'lgkmcnt\((\d+)\)', i.text)
            if m:
                n = int(m.group(1))
                if len(ds) > n: del ds[:len(ds) - n]
                if n == 0: smem = set()
            out.append(i)
            continue
        touched = set(i.uses) | set(i.defs)
        need_vm = need_ds = None
        for k, e in enumerate(vm):
            if touched & e[0]:
                need_vm = len(vm) - 1 - k
        for k, e in enumerate(ds):
            if touched & e[0]:
                need_ds = len(ds) - 1 - k
        if smem and (touched & smem):
            need_ds = 0
        if need_ds is not None and smem:
            need_ds = 0
        if need_vm is not None or need_ds is not None:
            wait(need_vm, need_ds)
            if need_vm is not None:
                del vm[:len(vm) - min(need_vm, 63)]
            if need_ds is not None:
                del ds[:len(ds) - min(need_ds, 15)]
                if need_ds == 0: smem = set()
        if i.kind == 'vmem':
            vm.append((set(i.defs), i.tag))
            assert len(vm) <= 63 or True
        elif i.kind == 'ds':
            ds.append((set(i.defs), i.tag))
        elif i.kind == 'smem':
            smem |= set(i.defs)
        out.append(i)
    return out


def states(i):
    if i.op == 's_nop':
        return int(i.text.split()[1], 0) + 1
    return 1

def mfma_passes(op):
    if '32x32x16' in op: return 8
    if '16x16x32' in op: return 4
    raise ValueError(op)

def need_states(p, c):
    n = 0
    pd = set(p.defs)
    cu = set(c.uses); cd = set(c.defs)
    isv = lambda s: {r for r in s if r[0] in 'va'}
    iss = lambda s: {r for r in s if r[0] == 's' or r == ('x', 'vcc')}
    if p.kind == 'valu':
        vw = isv(pd)
        if c.kind == 'mfma' and vw & cu: n = max(n, 2)
        if c.kind == 'valu':
            if c.op.startswith('v_permlane') and vw & cu: n = max(n, 2)
            if c.dpp and vw & cu: n = max(n, 2)
            if (c.op.startswith('v_readlane') or c.op.startswith('v_readfirstlane')) and vw & cu: n = max(n, 1)
            if p.op.replace('_e32', '').replace('_e64', '') in TRANS and vw & cu: n = max(n, 1)
            if iss(pd) & cu: n = max(n, 2)
            if ('op_sel' in (p.mods or '') and not p.op.startswith('v_pk')) and vw & (cu | cd): n = max(n, 1)
        if c.kind == 'vmem' and iss(pd) & cu: n = max(n, 5)
        if c.kind in ('smem',) and iss(pd) & cu: n = max(n, 5)
        if c.kind in ('salu',) and iss(pd) & cu: n = max(n, 1)
        if ('x', 'exec') in pd and c.kind in ('valu', 'mfma'): n = max(n, 5)
        if p.op.startswith('v_dot2'):
            if (vw & (cu | cd)):
                ops = c.text.split(None, 1)[1]
                toks = split_ops(ops)
                same_c_only = (c.op == p.op and len(toks) >= 4 and not (vw & set(regs_of(toks[1]) + regs_of(toks[2]))))
                if not same_c_only: n = max(n, 3)
    if p.kind == 'salu':
        if ('x', 'm0') in pd and c.kind == 'vmem' and ('x', 'm0') in cu: n = max(n, 1)
    if p.kind == 'mfma':
        ps = mfma_passes(p.op)
        big = {4: 8, 8: 12}[ps]
        D = pd
        if c.kind == 'mfma':
            if D & set(c.srcAB): n = max(n, big)
            cc = set(c.srcC)
            if D & cc:
                if not (cc == D and mfma_passes(c.op) == ps):
                    n = max(n, {4: 6, 8: 10}[ps])
            elif D & cd:
                n = max(n, big)
        elif c.kind in ('valu', 'vmem', 'ds'):
            if D & (cu | cd): n = max(n, big)
        if c.kind == 'valu' and set(p.srcC) & cd: n = max(n, {4: 3, 8: 7}[ps])
    if p.wide_store_data:
        w = set(p.wide_store_data)
        if c.kind == 'valu' and w & cd: n = max(n, 2)
        elif c.kind in ('ds', 'vmem', 'mfma') and w & cd: n = max(n, 1)
    return n


def insert_nops(ins):
    out = []
    WIN = 14
    for c in ins:
        if c.is_real():
            dist = 0
            need = 0
            k = len(out) - 1
            while k >= 0 and dist < WIN:
                p = out[k]
                if p.is_real():
                    r = need_states(p, c)
                    if r > dist:
                        need = max(need, r - dist)
                    dist += states(p)
                k -= 1
            while need > 0:
                m = min(need, 16)
                out.append(Ins('s_nop %d' % (m - 1)))
                need -= m
        out.append(c)
    return out


def check_backedges(ins):
    labels = {i.op: k for k, i in enumerate(ins) if i.kind == 'label'}
    probs = []
    for k, b in enumerate(ins):
        if b.kind == 'branch':
            tgt = b.text.split()[-1]
            if tgt in labels:
                t = labels[tgt]
                tail = [x for x in ins[max(0, k - 30):k + 1] if x.is_real()][-14:]
                head = [x for x in ins[t:t + 40] if x.is_real()][:14]
                for ci, c in enumerate(head):
                    dist = sum(states(x) for x in head[:ci])
                    for p in reversed(tail):
                        r = need_states(p, c)
                        if r > dist:
                            probs.append('%s -> %s needs %d has %d (edge %s)' % (p.text, c.text, r, dist, tgt))
                        dist += states(p)
    return probs


def finish(prog):
    ins = insert_waits(prog.ins)
    ins = insert_nops(ins)
    probs = check_backedges(ins)
    if probs:
        raise RuntimeError('hazards on branch edges:\n' + '\n'.join(probs))
    lines = []
    for i in ins:
        if i.kind == 'label':
            lines.append(i.text)
        else:
            lines.append('    ' + i.text)
    return '\n'.join(lines), ins


def v(b, n=1):
    return 'v%d' % b if n == 1 else 'v[%d:%d]' % (b, b + n - 1)
def a(b, n=1):
    return 'a%d' % b if n == 1 else 'a[%d:%d]' % (b, b + n - 1)
def s(b, n=1):
    return 's%d' % b if n == 1 else 's[%d:%d]' % (b, b + n - 1)


class Sched:
    def __init__(self, p, budget=5.0):
        self.p = p; self.budget = budget; self.queues = []; self.step = 0; self.carry = 0.0
    def add_queue(self):
        q = []; self.queues.append(q); return q
    @staticmethod
    def cost_of(line):
        if not isinstance(line, str): return 0.0
        op = line.split()[0]
        if op.startswith('@'): return 0.25
        if op in ('v_exp_f32', 'v_rcp_f32', 'v_rsq_f32'): return 2.0
        if op.startswith('s_barrier'): return 1.0
        if op.startswith('s_'): return 0.75
        if op.startswith('buffer_') or op.startswith('global_'): return 1.5
        return 1.0
    def put(self, q, lines, earliest=0, tag=None):
        if isinstance(lines, (str,)) or callable(lines): lines = [lines]
        q.append((earliest, sum(self.cost_of(l) for l in lines), lines, tag))
    def emit_lines(self, lines, tag):
        for l in lines:
            if callable(l): l(self.p)
            elif l.startswith('@waitvm'): self.p.waitvm(l.split()[1])
            elif l.startswith('@waitds'): self.p.waitds(l.split()[1])
            else: self.p.I(l, tag=tag)
    def gap(self, used=0.0, budget=None):
        b = (self.budget if budget is None else budget) - used + self.carry
        self.carry = 0.0
        progress = True
        while progress:
            progress = False
            for q in self.queues:
                if q and q[0][0] <= self.step and (q[0][1] <= b + 1e-9 or (b > 0.4 and q[0][1] > self.budget)):
                    e, c, lines, tag = q.pop(0)
                    self.emit_lines(lines, tag); b -= c; progress = True
                    break
        if b > 0: self.carry = min(b, 1.0)
        self.step += 1
    def flush(self, q):
        while q:
            e, c, lines, tag = q.pop(0)
            self.emit_lines(lines, tag)
    def pending(self):
        return sum(len(q) for q in self.queues)
```

```python
from asmlib import *

S, D, F = 2048, 448, 1792
KNAME = 'sequential_preLN__ssm_conv_h3__glu_gated_glu__prompt'
NWG = 224

WS_EPOCH = 0
WS_FLAGS = 0x1000
WS_STATS = 0x40000
WS_STAMP = 0x50000
WS_KVT = 0x100000
WS_XT = 0x300000
WS_HT = 0x500000
WS_HH = 0x700000
WS_END = 0xE00000

S_WG = 2
P_Q, P_K, P_V, P_SH, P_FK, P_SD, P_BX, P_WG = 4, 6, 8, 10, 12, 14, 16, 18
P_WU, P_WD, P_OUT, P_DBG, P_WS = 20, 22, 24, 26, 28
R_Q, R_K, R_V, R_WS, R_WG, R_WU, R_WD, R_OUT, R_T0, R_T1 = 32, 36, 40, 44, 48, 52, 56, 60, 64, 68
R_SH, R_SD = 4, 8
OOB = 0x80000000

def srd(p, r, ptr, nbytes):
    p.I('s_mov_b32 %s, %s' % (s(r), s(ptr)))
    p.I('s_and_b32 %s, %s, 0xffff' % (s(r + 1), s(ptr + 1)))
    p.I('s_mov_b32 %s, 0x%x' % (s(r + 2), nbytes))
    p.I('s_mov_b32 %s, 0x20000' % s(r + 3))

def load_kernargs(p):
    p.I('s_load_dwordx16 s[4:19], s[0:1], 0')
    p.I('s_load_dwordx8 s[20:27], s[0:1], 64')
    p.I('s_load_dwordx2 s[28:29], s[0:1], 96')

HEADER = '''; Kernarg layout (104 bytes, ptrs only, base s[0:1]): q k v shift_k ssm_k ssm_D B_x w_gate w_up w_down out debug ws
%s
.amdgcn_target "amdgcn-amd-amdhsa--gfx950"
.text
'''

def kernel_text(name, body, vgpr=512, accum=256, sgpr=102):
    t = '.globl %s\n.p2align 8\n.type %s,@function\n%s:\n%s\n' % (name, name, name, body)
    kd = '''.amdhsa_kernel %s
  .amdhsa_next_free_vgpr %d
  .amdhsa_next_free_sgpr %d
  .amdhsa_accum_offset %d
  .amdhsa_group_segment_fixed_size 0
  .amdhsa_kernarg_size 104
  .amdhsa_user_sgpr_count 2
  .amdhsa_user_sgpr_kernarg_segment_ptr 1
  .amdhsa_system_sgpr_workgroup_id_x 1
  .amdhsa_float_denorm_mode_32 3
.end_amdhsa_kernel
''' % (name, vgpr, sgpr, accum)
    return t, kd

class Alloc:
    def __init__(self, lo, hi):
        self.n = lo; self.hi = hi
    def get(self, k=1, align=1):
        if k >= 2 and align < 2: align = 2
        self.n = (self.n + align - 1) // align * align
        b = self.n; self.n += k
        assert self.n <= self.hi, 'out of registers'
        return b

def stamp_init(p, kidx):
    p.I('v_cmp_eq_u32 vcc, 0, v0')
    p.I('s_lshl_b32 s100, s2, 9')
    p.I('s_add_u32 s100, s100, 0x%x' % (WS_STAMP + kidx * 0x20000))
    p.I('v_mov_b32 v250, 0x%x' % OOB)
    p.I('v_mov_b32 v252, s100')
    p.I('v_cndmask_b32 v250, v250, v252, vcc')
def stamp_take(p):
    p.I('s_memrealtime s[96:97]')
    p.I('s_memtime s[98:99]')
def stamp_put(p, idx):
    p.I('s_waitcnt lgkmcnt(0)')
    for i in range(4): p.I('v_mov_b32 v%d, s%d' % (252 + i, 96 + i))
    p.I('buffer_store_dwordx4 v[252:255], v250, s[%d:%d], 0 offen offset:%d' % (R_WS, R_WS + 3, idx * 16))
def stamp(p, idx):
    stamp_take(p); stamp_put(p, idx)
```

```python
from common import *
import p0, p2
from p0 import f32

WS_CS = 0x48000
WS_ST2 = 0x70000

def emit_q_dma(p, va):
    vo = va.get()
    p.I('v_and_b32 %s, 63, v0' % v(vo))
    p.I('v_lshlrev_b32 %s, 4, %s' % (v(vo), v(vo)))
    p.I('s_sub_u32 s72, s2, %d' % NWG)
    p.I('s_mul_i32 s72, s72, %d' % (64 * 896))
    p.I('v_readfirstlane_b32 s88, v0')
    p.I('s_lshr_b32 s88, s88, 6')
    p.I('s_lshl_b32 s77, s88, 10')
    p.I('s_add_u32 s72, s72, s77')
    for i in range(14):
        p.I('s_add_u32 m0, s77, %d' % (i * 4096))
        p.I('s_add_u32 s73, s72, %d' % (i * 4096))
        p.I('buffer_load_dwordx4 %s, %s, s73 offen lds' % (v(vo), s(R_Q, 4)))

def emit_q_setup(p, va):
    R = p0.P0R()
    R.l16 = va.get(); R.row0 = va.get(); R.sa = va.get(); R.sa3 = va.get(); t0 = va.get(); z = va.get(4, 4)
    p.I('v_and_b32 %s, 15, v0' % v(R.l16))
    p.I('v_lshrrev_b32 %s, 4, v0' % v(R.row0))
    p.I('v_mul_u32_u24 %s, 896, %s' % (v(R.sa), v(R.row0)))
    p.I('v_lshl_add_u32 %s, %s, 4, %s' % (v(R.sa), v(R.l16), v(R.sa)))
    for i in range(4): p.I('v_mov_b32 %s, 0' % v(z + i))
    p.I('v_mov_b32 %s, 57344' % v(t0))
    p.I('ds_write_b128 %s, %s' % (v(t0), v(z, 4)))
    p.I('s_sub_u32 s72, s2, %d' % NWG)
    p.I('s_lshl_b32 s72, s72, 6')
    p.I('v_add_u32 %s, s72, %s' % (v(R.row0), v(R.row0)))
    R.addrs = []
    for ps in range(4):
        srow = va.get()
        p.I('v_add_u32 %s, %d, %s' % (v(srow), 16 * ps, v(R.row0)))
        R.addrs.append(p0.stats_addr(p, va, srow, R.l16, None, t0))
    R.ta = va.get(); R.go = va.get(); lane = va.get(); t1 = va.get()
    p.I('v_and_b32 %s, 63, v0' % v(lane))
    p.I('v_lshrrev_b32 %s, 4, %s' % (v(t0), v(lane)))
    p.I('v_bfe_u32 %s, %s, 2, 2' % (v(t1), v(lane)))
    p.I('v_lshl_add_u32 %s, %s, 3, %s' % (v(t1), v(t0), v(t1)))
    p.I('v_mul_u32_u24 %s, 896, %s' % (v(R.ta), v(t1)))
    p.I('v_and_b32 %s, 3, %s' % (v(t1), v(lane)))
    p.I('v_lshl_add_u32 %s, %s, 3, %s' % (v(R.ta), v(t1), v(R.ta)))
    p.I('s_and_b32 s72, s88, 1')
    p.I('s_mul_i32 s73, s72, %d' % (32 * 896))
    p.I('s_lshr_b32 s74, s88, 1')
    p.I('s_lshl_b32 s75, s74, 5')
    p.I('s_add_u32 s73, s73, s75')
    p.I('v_add_u32 %s, s73, %s' % (v(R.ta), v(R.ta)))
    p.I('v_and_b32 %s, 15, %s' % (v(t1), v(lane)))
    p.I('v_lshlrev_b32 %s, 12, %s' % (v(R.go), v(t1)))
    p.I('v_lshl_add_u32 %s, %s, 4, %s' % (v(R.go), v(t0), v(R.go)))
    p.I('s_lshl_b32 s74, s74, 16')
    p.I('s_lshl_b32 s72, s72, 6')
    p.I('s_add_u32 s74, s74, s72')
    p.I('s_sub_u32 s72, s2, %d' % NWG)
    p.I('s_lshl_b32 s72, s72, 7')
    p.I('s_add_u32 s74, s74, s72')
    p.I('v_add_u32 %s, s74, %s' % (v(R.go), v(R.go)))
    return R

def emit_q_work(p, va, R, sc='sc1', st_=None):
    p.I('s_waitcnt vmcnt(0) lgkmcnt(0)')
    p.I('s_barrier')
    if st_: st_(p, 9)
    xr = va.get(56, 4)
    for j in range(14):
        for rho in range(2):
            p.I('ds_read_b64_tr_b16 %s, %s offset:%d' % (v(xr + 4 * j + 2 * rho, 2), v(R.ta), j * 64 + rho * 4 * 896))
    sd = va.get(64, 4); t0 = va.get()
    p.I('v_mov_b32 %s, 57344' % v(t0))
    p.I('v_cmp_gt_u32 vcc, 8, %s' % v(R.l16))
    for ps in range(4):
        p.I('v_add_u32 %s, %d, %s' % (v(R.sa3), ps * 16 * 896 + 768, v(R.sa)))
        p.I('v_cndmask_b32 %s, %s, %s, vcc' % (v(R.sa3), v(t0), v(R.sa3)))
        for i in range(3):
            p.I('ds_read_b128 %s, %s offset:%d' % (v(sd + 16 * ps + 4 * i, 4), v(R.sa), ps * 16 * 896 + 256 * i))
        p.I('ds_read_b128 %s, %s' % (v(sd + 16 * ps + 12, 4), v(R.sa3)))
    for j in range(14):
        p.I('s_mov_b32 s73, 0x%x' % (WS_XT + j * 32 * 4096))
        p.I('buffer_store_dwordx4 %s, %s, %s, s73 offen %s' % (v(xr + 4 * j, 4), v(R.go), s(R_WS, 4), sc))
    if st_: st_(p, 10)
    for ps in range(4):
        p0.stats_math(p, va, sd + 16 * ps, R.addrs[ps], sc)

def emit_colsum(p, va, sc='sc1'):
    p.C('---- helper: column sums ----')
    p.I('s_sub_u32 s72, s2, %d' % NWG)
    p.I('s_cmp_ge_u32 s72, 28')
    p.I('s_cbranch_scc1 L_cs_done')
    p.I('s_cmp_ge_u32 s72, 14')
    p.I('s_cselect_b32 %s, %s, %s' % (s(R_T0), s(R_WU), s(R_WG)))
    p.I('s_cselect_b32 %s, %s, %s' % (s(R_T0 + 1), s(R_WU + 1), s(R_WG + 1)))
    p.I('s_cselect_b32 s74, 14, 0')
    p.I('s_cselect_b32 s75, 1792, 0')
    p.I('s_mov_b32 %s, %d' % (s(R_T0 + 2), D * F * 2))
    p.I('s_mov_b32 %s, 0x20000' % s(R_T0 + 3))
    p.I('s_sub_u32 s72, s72, s74')
    vo = va.get(); t = va.get()
    p.I('v_lshrrev_b32 %s, 4, v0' % v(t))
    p.I('v_mul_u32_u24 %s, 3584, %s' % (v(vo), v(t)))
    p.I('v_and_b32 %s, 15, v0' % v(t))
    p.I('v_lshl_add_u32 %s, %s, 4, %s' % (v(vo), v(t), v(vo)))
    p.I('s_lshl_b32 s73, s72, 8')
    p.I('v_add_u32 %s, s73, %s' % (v(vo), v(vo)))
    ld = va.get(28 * 4, 4); acc = va.get(8, 2); u = va.get(2, 2)
    for i in range(28):
        p.I('s_mov_b32 s73, %d' % (i * 16 * 3584))
        p.I('buffer_load_dwordx4 %s, %s, %s, s73 offen' % (v(ld + 4 * i, 4), v(vo), s(R_T0, 4)))
    for i in range(8): p.I('v_mov_b32 %s, 0' % v(acc + i))
    for i in range(28):
        for k in range(4):
            p.I('v_lshlrev_b32 %s, 16, %s' % (v(u), v(ld + 4 * i + k)))
            p.I('v_and_b32 %s, 0xffff0000, %s' % (v(u + 1), v(ld + 4 * i + k)))
            p.I('v_pk_add_f32 %s, %s, %s' % (v(acc + 2 * k, 2), v(acc + 2 * k, 2), v(u, 2)))
    wa = va.get(); ra = va.get(); rd = va.get(16)
    p.I('v_lshrrev_b32 %s, 4, v0' % v(t))
    p.I('v_lshlrev_b32 %s, 9, %s' % (v(wa), v(t)))
    p.I('v_and_b32 %s, 15, v0' % v(t))
    p.I('v_lshl_add_u32 %s, %s, 5, %s' % (v(wa), v(t), v(wa)))
    p.I('ds_write_b128 %s, %s' % (v(wa), v(acc, 4)))
    p.I('ds_write_b128 %s, %s offset:16' % (v(wa), v(acc + 4, 4)))
    p.I('s_waitcnt lgkmcnt(0)')
    p.I('s_barrier')
    p.I('v_and_b32 %s, 127, v0' % v(t))
    p.I('v_lshlrev_b32 %s, 2, %s' % (v(ra), v(t)))
    for i in range(16):
        p.I('ds_read_b32 %s, %s offset:%d' % (v(rd + i), v(ra), 512 * i))
    for i in range(1, 16):
        p.I('v_add_f32 %s, %s, %s' % (v(rd), v(rd), v(rd + i)))
    p.I('s_lshl_b32 s73, s72, 7')
    p.I('s_add_u32 s73, s73, s75')
    p.I('s_lshl_b32 s73, s73, 2')
    p.I('s_add_u32 s73, s73, 0x%x' % WS_CS)
    p.I('v_mov_b32 %s, 0x%x' % (v(t), OOB))
    p.I('v_cmp_gt_u32 vcc, 128, v0')
    p.I('v_cndmask_b32 %s, %s, %s, vcc' % (v(ra), v(t), v(ra)))
    p.I('buffer_store_dword %s, %s, %s, s73 offen %s' % (v(rd), v(ra), s(R_WS, 4), sc))
    p.I('s_waitcnt vmcnt(0)')
    p.L('L_cs_done')

def emit_stats2_setup(p, va):
    R = p2.R2()
    R.vo = vo = va.get(); R.jb = jb = va.get(); R.sa = va.get(); R.sr = va.get(); R.go = va.get()
    mark = va.n
    t = va.get(); t2 = va.get()
    p.I('v_and_b32 %s, 63, v0' % v(t))
    p.I('v_lshrrev_b32 %s, 3, %s' % (v(t2), v(t)))
    p.I('v_lshlrev_b32 %s, 12, %s' % (v(vo), v(t2)))
    p.I('v_bfe_u32 %s, %s, 2, 1' % (v(t2), v(t)))
    p.I('v_lshrrev_b32 %s, 4, %s' % (v(R.sa), v(t)))
    p.I('v_xor_b32 %s, %s, %s' % (v(t2), v(t2), v(R.sa)))
    p.I('v_and_b32 %s, 1, %s' % (v(t2), v(t2)))
    p.I('v_lshl_add_u32 %s, %s, 6, %s' % (v(vo), v(t2), v(vo)))
    p.I('v_and_b32 %s, 3, v0' % v(t2))
    p.I('v_lshl_add_u32 %s, %s, 4, %s' % (v(vo), v(t2), v(vo)))
    p.I('s_sub_u32 s76, s2, %d' % NWG)
    p.I('s_lshl_b32 s76, s76, 7')
    p.I('s_lshl_b32 s72, s88, 15')
    p.I('s_add_u32 s76, s76, s72')
    p.I('s_add_u32 s76, s76, 0x%x' % WS_HT)
    p.I('s_lshl_b32 s77, s88, 10')
    p.I('v_bfe_u32 %s, %s, 2, 2' % (v(t2), v(t)))
    p.I('v_lshlrev_b32 %s, 7, %s' % (v(jb), v(t2)))
    p.I('v_lshrrev_b32 %s, 5, %s' % (v(t2), v(t)))
    p.I('v_lshl_add_u32 %s, %s, 10, %s' % (v(jb), v(t2), v(jb)))
    p.I('v_bfe_u32 %s, %s, 3, 1' % (v(t2), v(t)))
    p.I('v_lshl_add_u32 %s, %s, 6, %s' % (v(jb), v(t2), v(jb)))
    p.I('v_bfe_u32 %s, %s, 4, 1' % (v(t2), v(t)))
    p.I('v_lshl_add_u32 %s, %s, 5, %s' % (v(jb), v(t2), v(jb)))
    p.I('v_and_b32 %s, 3, %s' % (v(t2), v(t)))
    p.I('v_lshl_add_u32 %s, %s, 3, %s' % (v(jb), v(t2), v(jb)))
    p.I('s_and_b32 s72, s88, 1')
    p.I('s_lshl_b32 s72, s72, 6')
    p.I('v_xor_b32 %s, s72, %s' % (v(jb), v(jb)))
    p.I('s_lshr_b32 s72, s88, 1')
    p.I('s_mul_i32 s72, s72, %d' % (14 * 16 * 128))
    p.I('v_add_u32 %s, s72, %s' % (v(jb), v(jb)))
    p.I('v_and_b32 %s, 31, v0' % v(t))
    p.I('v_lshlrev_b32 %s, 3, %s' % (v(t2), v(t)))
    p.I('v_add_u32 %s, %d, %s' % (v(t2), p2.HT_HALF, v(t2)))
    p.I('s_and_b32 s72, s88, 1')
    p.I('s_lshl_b32 s72, s72, 9')
    p.I('v_add_u32 %s, s72, %s' % (v(R.sr), v(t2)))
    p.I('s_lshr_b32 s73, s88, 1')
    p.I('s_lshl_b32 s73, s73, 8')
    p.I('v_add_u32 %s, s73, %s' % (v(R.sa), v(R.sr)))
    p.I('s_sub_u32 s72, s2, %d' % NWG)
    p.I('s_lshl_b32 s72, s72, 6')
    p.I('s_and_b32 s73, s88, 1')
    p.I('s_lshl_b32 s73, s73, 5')
    p.I('s_add_u32 s72, s72, s73')
    p.I('v_add_u32 %s, s72, %s' % (v(R.go), v(t)))
    p.I('v_lshlrev_b32 %s, 4, %s' % (v(R.go), v(R.go)))
    p.I('v_add_u32 %s, 0x%x, %s' % (v(R.go), WS_ST2, v(R.go)))
    p.I('v_and_b32 %s, 0xa0, v0' % v(t))
    p.I('v_mov_b32 %s, 0x%x' % (v(t2), OOB))
    p.I('v_cmp_eq_u32 vcc, 0, %s' % v(t))
    p.I('v_cndmask_b32 %s, %s, %s, vcc' % (v(R.go), v(t2), v(R.go)))
    va.n = mark
    return R

def emit_stats2(p, va, R, s_tag, sc='sc1', st_=None):
    p.C('---- helper: LN2 statistics ----')
    for i in range(14):
        p.I('s_add_u32 m0, s77, %d' % (i * 4096))
        p.I('s_add_u32 s72, s76, %d' % (i * 32 * 4096))
        p.I('buffer_load_dwordx4 %s, %s, s72 offen %s lds' % (v(R.vo), s(R_WS, 4), sc))
    g = va.get(4, 4); sm = g; sq = g + 1; sm2 = va.get(2, 2); ones = va.get(); t = va.get(); fr = va.get(56, 4); pr = va.get(4, 4)
    p.I('v_mov_b32 %s, 0x3f803f80' % v(ones))
    for x in (sm, sq, sm2, sm2 + 1): p.I('v_mov_b32 %s, 0' % v(x))
    p.I('s_waitcnt vmcnt(0)')
    p.I('s_barrier')
    if st_: st_(p, 11)
    for i in range(14):
        for rho in range(2):
            p.I('ds_read_b64_tr_b16 %s, %s offset:%d' % (v(fr + 4 * i + 2 * rho, 2), v(R.jb), (16 * i + 4 * rho) * 128))
    for i in range(14):
        for k in range(4):
            f = fr + 4 * i + k
            a0, a1 = (sm, sq) if k % 2 == 0 else (sm2, sm2 + 1)
            p.I('v_dot2_f32_bf16 %s, %s, %s, %s' % (v(a0), v(f), v(ones), v(a0)))
            p.I('v_dot2_f32_bf16 %s, %s, %s, %s' % (v(a1), v(f), v(f), v(a1)))
    p.I('v_add_f32 %s, %s, %s' % (v(sm), v(sm), v(sm2)))
    p.I('v_add_f32 %s, %s, %s' % (v(sq), v(sq), v(sm2 + 1)))
    for x in (sm, sq):
        p.I('v_mov_b32 %s, %s' % (v(t), v(x)))
        p.I('v_permlane32_swap_b32 %s, %s' % (v(t), v(x)))
        p.I('v_add_f32 %s, %s, %s' % (v(x), v(x), v(t)))
    p.I('ds_write_b64 %s, %s' % (v(R.sa), v(sm, 2)))
    p.I('s_waitcnt lgkmcnt(0)')
    p.I('s_barrier')
    p.I('ds_read_b64 %s, %s' % (v(pr, 2), v(R.sr)))
    p.I('ds_read_b64 %s, %s offset:256' % (v(pr + 2, 2), v(R.sr)))
    m, r = g, g + 1
    p.I('v_add_f32 %s, %s, %s' % (v(m), v(pr), v(pr + 2)))
    p.I('v_add_f32 %s, %s, %s' % (v(r), v(pr + 1), v(pr + 3)))
    p.I('v_mul_f32 %s, 0x%08x, %s' % (v(m), f32(1.0 / D), v(m)))
    p.I('v_mul_f32 %s, 0x%08x, %s' % (v(r), f32(1.0 / D), v(r)))
    p.I('v_fma_f32 %s, -%s, %s, %s' % (v(r), v(m), v(m), v(r)))
    p.I('v_max_f32 %s, 0, %s' % (v(r), v(r)))
    p.I('v_add_f32 %s, 0x%08x, %s' % (v(r), f32(1e-5), v(r)))
    p.I('v_rsq_f32 %s, %s' % (v(r), v(r)))
    p.I('v_mov_b32 %s, s%d' % (v(g + 2), s_tag))
    p.I('v_mov_b32 %s, s%d' % (v(g + 3), s_tag))
    p.I('buffer_store_dwordx4 %s, %s, %s, 0 offen %s' % (v(g, 4), v(R.go), s(R_WS, 4), sc))
```

```python
from common import *

class P0R: pass

SEG64 = True
def emit_p0_loads(p, va, stats=True, xpart=True):
    R = P0R()
    sRB, sC, sT, sT2, sK5 = 72, 73, 74, 75, 76
    p.C('---- P0 loads ----')
    p.I('s_and_b32 %s, s2, 31' % s(sRB))
    p.I('s_lshr_b32 %s, s2, 5' % s(sC))
    R.cpl = va.get(); R.gq = va.get()
    vpos = va.get(); vneg = va.get(); t0 = va.get(); t1 = va.get()
    if SEG64:
        p.I('v_and_b32 %s, 15, v0' % v(R.cpl))
        p.I('v_bfe_u32 %s, v0, 6, 1' % v(t0))
        p.I('v_lshl_add_u32 %s, %s, 4, %s' % (v(R.cpl), v(t0), v(R.cpl)))
        p.I('v_bfe_u32 %s, v0, 4, 2' % v(R.gq))
        p.I('v_lshrrev_b32 %s, 7, v0' % v(t0))
        p.I('v_lshl_add_u32 %s, %s, 2, %s' % (v(R.gq), v(t0), v(R.gq)))
    else:
        p.I('v_and_b32 %s, 7, v0' % v(R.cpl))
        p.I('v_lshrrev_b32 %s, 6, v0' % v(t0))
        p.I('v_lshl_add_u32 %s, %s, 3, %s' % (v(R.cpl), v(t0), v(R.cpl)))
        p.I('v_bfe_u32 %s, v0, 3, 3' % v(R.gq))
    p.I('s_mul_i32 %s, %s, %d' % (s(sT), s(sRB), 64 * 896))
    p.I('s_lshl_b32 %s, %s, 7' % (s(sT2), s(sC)))
    p.I('s_add_u32 %s, %s, %s' % (s(sT), s(sT), s(sT2)))
    p.I('v_mul_u32_u24 %s, %d, %s' % (v(vpos), 8 * 896, v(R.gq)))
    p.I('v_lshl_add_u32 %s, %s, 2, %s' % (v(vpos), v(R.cpl), v(vpos)))
    p.I('v_add_u32 %s, %s, %s' % (v(vpos), s(sT), v(vpos)))
    p.I('v_subrev_u32 %s, 2688, %s' % (v(vneg), v(vpos)))
    p.I('s_movk_i32 %s, 4480' % s(sK5))
    R.kd = va.get(12); R.vd = va.get(8); R.xd = va.get(8); R.shw = va.get(4, 4)
    def rowload(dst, srdr):
        for r in range(8):
            if r < 5:
                p.I('buffer_load_dword %s, %s, %s, 0 offen offset:%d' % (v(dst + r), v(vpos), s(srdr, 4), 896 * r))
            else:
                p.I('buffer_load_dword %s, %s, %s, %s offen offset:%d' % (v(dst + r), v(vpos), s(srdr, 4), s(sK5), 896 * (r - 5)))
    rowload(R.kd + 3, R_K)
    for i in range(3):
        p.I('buffer_load_dword %s, %s, %s, 0 offen offset:%d' % (v(R.kd + i), v(vneg), s(R_K, 4), 896 * i))
    p.I('s_lshl_b32 %s, %s, 9' % (s(sT), s(sC)))
    p.I('v_lshl_add_u32 %s, %s, 4, %s' % (v(t0), v(R.cpl), s(sT)))
    p.I('buffer_load_dwordx4 %s, %s, %s, 0 offen' % (v(R.shw, 4), v(t0), s(R_SH, 4)))
    rowload(R.vd, R_V)
    if xpart: rowload(R.xd, R_Q)
    if not stats: return R
    R.srow = va.get(); R.l16 = va.get(); vs = va.get(); vs2 = va.get(); R.sd = va.get(16, 4)
    p.I('v_lshrrev_b32 %s, 4, v0' % v(R.srow))
    p.I('s_lshl_b32 %s, %s, 6' % (s(sT), s(sRB)))
    p.I('s_lshl_b32 %s, %s, 4' % (s(sT2), s(sC)))
    p.I('s_add_u32 %s, %s, %s' % (s(sT), s(sT), s(sT2)))
    p.I('v_add_u32 %s, %s, %s' % (v(R.srow), s(sT), v(R.srow)))
    p.I('v_and_b32 %s, 15, v0' % v(R.l16))
    p.I('v_mul_u32_u24 %s, 896, %s' % (v(vs), v(R.srow)))
    p.I('v_lshl_add_u32 %s, %s, 4, %s' % (v(vs), v(R.l16), v(vs)))
    p.I('s_cmp_lt_u32 %s, 4' % s(sC))
    p.I('s_cselect_b32 %s, 16, 0' % s(sT))
    p.I('s_cselect_b32 %s, 8, 0' % s(sT2))
    p.I('v_mov_b32 %s, 0x%x' % (v(t0), OOB))
    p.I('v_cmp_gt_u32 vcc, %s, %s' % (s(sT2), v(R.l16)))
    p.I('v_cndmask_b32 %s, %s, %s, vcc' % (v(vs2), v(t0), v(vs)))
    p.I('v_cmp_gt_u32 vcc, %s, %s' % (s(sT), v(R.l16)))
    p.I('v_cndmask_b32 %s, %s, %s, vcc' % (v(vs), v(t0), v(vs)))
    for i in range(3):
        p.I('buffer_load_dwordx4 %s, %s, %s, 0 offen offset:%d' % (v(R.sd + 4 * i, 4), v(vs), s(R_Q, 4), 256 * i))
    p.I('buffer_load_dwordx4 %s, %s, %s, 0 offen offset:768' % (v(R.sd + 12, 4), v(vs2), s(R_Q, 4)))
    return R

def stats_addr(p, va, srow, l16, sC, t0):
    vsa = va.get(); q0 = va.get(); q1 = va.get()
    p.I('v_lshrrev_b32 %s, 10, %s' % (v(vsa), v(srow)))
    p.I('v_lshlrev_b32 %s, 13, %s' % (v(vsa), v(vsa)))
    p.I('v_bfe_u32 %s, %s, 3, 2' % (v(q0), v(srow)))
    p.I('v_add_u32 %s, 1, %s' % (v(q1), v(q0)))
    p.I('v_bfe_u32 %s, %s, 1, 1' % (v(q1), v(q1)))
    p.I('v_lshl_add_u32 %s, %s, 12, %s' % (v(vsa), v(q1), v(vsa)))
    p.I('v_and_b32 %s, 1, %s' % (v(q0), v(q0)))
    p.I('v_lshl_add_u32 %s, %s, 9, %s' % (v(vsa), v(q0), v(vsa)))
    p.I('v_bfe_u32 %s, %s, 1, 2' % (v(q0), v(srow)))
    p.I('v_lshl_add_u32 %s, %s, 10, %s' % (v(vsa), v(q0), v(vsa)))
    p.I('v_bfe_u32 %s, %s, 5, 5' % (v(q0), v(srow)))
    p.I('v_lshl_add_u32 %s, %s, 4, %s' % (v(vsa), v(q0), v(vsa)))
    p.I('v_and_b32 %s, 1, %s' % (v(q0), v(srow)))
    p.I('v_lshl_add_u32 %s, %s, 3, %s' % (v(vsa), v(q0), v(vsa)))
    p.I('v_add_u32 %s, 0x%x, %s' % (v(vsa), WS_STATS, v(vsa)))
    if sC is not None:
        p.I('s_cmp_lt_u32 %s, 4' % s(sC))
        p.I('s_cselect_b32 s74, 1, 0')
        p.I('v_cmp_gt_u32 vcc, s74, %s' % v(l16))
    else:
        p.I('v_cmp_eq_u32 vcc, 0, %s' % v(l16))
    p.I('v_mov_b32 %s, 0x%x' % (v(t0), OOB))
    p.I('v_cndmask_b32 %s, %s, %s, vcc' % (v(vsa), v(t0), v(vsa)))
    return vsa

def emit_helper_stats(p, va, sc='sc1'):
    p.C('---- helper: LN1 stats ----')
    l16 = va.get(); row0 = va.get(); vs = va.get(); vs2 = va.get(); t0 = va.get()
    p.I('s_sub_u32 s72, s2, %d' % NWG)
    p.I('s_lshl_b32 s72, s72, 6')
    p.I('v_lshrrev_b32 %s, 4, v0' % v(row0))
    p.I('v_add_u32 %s, s72, %s' % (v(row0), v(row0)))
    p.I('v_and_b32 %s, 15, v0' % v(l16))
    p.I('v_mul_u32_u24 %s, 896, %s' % (v(vs), v(row0)))
    p.I('v_lshl_add_u32 %s, %s, 4, %s' % (v(vs), v(l16), v(vs)))
    p.I('v_mov_b32 %s, 0x%x' % (v(t0), OOB))
    p.I('v_cmp_gt_u32 vcc, 8, %s' % v(l16))
    p.I('v_cndmask_b32 %s, %s, %s, vcc' % (v(vs2), v(t0), v(vs)))
    sd = va.get(64, 4)
    for ps in range(4):
        p.I('s_mov_b32 s73, %d' % (ps * 16 * 896))
        for i in range(3):
            p.I('buffer_load_dwordx4 %s, %s, %s, s73 offen offset:%d' % (v(sd + 16 * ps + 4 * i, 4), v(vs), s(R_Q, 4), 256 * i))
        p.I('buffer_load_dwordx4 %s, %s, %s, s73 offen offset:768' % (v(sd + 16 * ps + 12, 4), v(vs2), s(R_Q, 4)))
    addrs = []
    for ps in range(4):
        srow = va.get()
        p.I('v_add_u32 %s, %d, %s' % (v(srow), 16 * ps, v(row0)))
        addrs.append(stats_addr(p, va, srow, l16, None, t0))
    return l16, sd, addrs

def emit_helper_stats_math(p, va, st, sc='sc1'):
    l16, sd, addrs = st
    for ps in range(4):
        stats_math(p, va, sd + 16 * ps, addrs[ps], sc)

def emit_p0_compute(p, va, R, sc='sc1', stats=True, xpart=True):
    sRB, sC, sT, sT2 = 72, 73, 74, 75
    sKV0, sKV1, sX0, sX1, sMASK, sSEL0, sSEL1 = 77, 78, 79, 80, 81, 82, 83
    p.C('---- P0 compute ----')
    p.I('s_and_b32 %s, s2, 31' % s(sRB))
    p.I('s_lshr_b32 %s, s2, 5' % s(sC))
    vst = va.get(); t0 = va.get()
    kd, vd, xd, shw = R.kd, R.vd, R.xd, R.shw
    sd = R.sd if stats else None
    p.I('s_lshl_b32 %s, %s, 18' % (s(sT), s(sC)))
    p.I('s_lshl_b32 %s, %s, 7' % (s(sT2), s(sRB)))
    p.I('s_add_u32 %s, %s, %s' % (s(sT), s(sT), s(sT2)))
    p.I('v_lshlrev_b32 %s, 13, %s' % (v(vst), v(R.cpl)))
    p.I('v_lshl_add_u32 %s, %s, 4, %s' % (v(vst), v(R.gq), v(vst)))
    p.I('v_add_u32 %s, %s, %s' % (v(vst), s(sT), v(vst)))
    p.I('s_mov_b32 %s, 0x%x' % (s(sKV0), WS_KVT))
    p.I('s_mov_b32 %s, 0x%x' % (s(sKV1), WS_KVT + 4096))
    p.I('s_mov_b32 %s, 0x%x' % (s(sX0), WS_XT))
    p.I('s_mov_b32 %s, 0x%x' % (s(sX1), WS_XT + 4096))
    p.I('s_mov_b32 %s, 0xffff0000' % s(sMASK))
    p.I('s_mov_b32 %s, 0x05040100' % s(sSEL0))
    p.I('s_mov_b32 %s, 0x07060302' % s(sSEL1))
    if stats:
        vsa = stats_addr(p, va, R.srow, R.l16, sC, t0)
    W = va.get(8, 2)
    K = va.get(22, 2)
    for i in list(range(3, 11)) + [0, 1, 2]:
        p.I('v_lshlrev_b32 %s, 16, %s' % (v(K + 2 * i), v(kd + i)))
        p.I('v_and_b32 %s, %s, %s' % (v(K + 2 * i + 1), s(sMASK), v(kd + i)))
    p.I('v_lshlrev_b32 %s, 16, %s' % (v(W + 0), v(shw + 0)))
    p.I('v_lshlrev_b32 %s, 16, %s' % (v(W + 1), v(shw + 2)))
    p.I('v_and_b32 %s, %s, %s' % (v(W + 2), s(sMASK), v(shw + 0)))
    p.I('v_and_b32 %s, %s, %s' % (v(W + 3), s(sMASK), v(shw + 2)))
    p.I('v_lshlrev_b32 %s, 16, %s' % (v(W + 4), v(shw + 1)))
    p.I('v_lshlrev_b32 %s, 16, %s' % (v(W + 5), v(shw + 3)))
    p.I('v_and_b32 %s, %s, %s' % (v(W + 6), s(sMASK), v(shw + 1)))
    p.I('v_and_b32 %s, %s, %s' % (v(W + 7), s(sMASK), v(shw + 3)))
    A = va.get(16, 2)
    for r in range(8):
        p.I('v_pk_mul_f32 %s, %s, %s' % (v(A + 2 * r, 2), v(K + 2 * (r + 3), 2), v(W, 2)))
    for j in range(1, 4):
        for r in range(8):
            p.I('v_pk_fma_f32 %s, %s, %s, %s' % (v(A + 2 * r, 2), v(K + 2 * (r + 3 - j), 2), v(W + 2 * j, 2), v(A + 2 * r, 2)))
    V = K
    for r in range(8):
        p.I('v_lshlrev_b32 %s, 16, %s' % (v(V + 2 * r), v(vd + r)))
        p.I('v_and_b32 %s, %s, %s' % (v(V + 2 * r + 1), s(sMASK), v(vd + r)))
    for r in range(8):
        p.I('v_pk_mul_f32 %s, %s, %s' % (v(A + 2 * r, 2), v(A + 2 * r, 2), v(V + 2 * r, 2)))
    o = va.get(16, 4)
    for ch in range(2):
        for i in range(4):
            p.I('v_cvt_pk_bf16_f32 %s, %s, %s' % (v(o + 4 * ch + i), v(A + 2 * (7 - 2 * i) + ch), v(A + 2 * (6 - 2 * i) + ch)))
    p.I('buffer_store_dwordx4 %s, %s, %s, %s offen %s' % (v(o, 4), v(vst), s(R_WS, 4), s(sKV0), sc))
    p.I('buffer_store_dwordx4 %s, %s, %s, %s offen %s' % (v(o + 4, 4), v(vst), s(R_WS, 4), s(sKV1), sc))
    if xpart:
        for ch in range(2):
            for i in range(4):
                p.I('v_perm_b32 %s, %s, %s, %s' % (v(o + 8 + 4 * ch + i), v(xd + 2 * i + 1), v(xd + 2 * i), s(sSEL0 + ch)))
        p.I('buffer_store_dwordx4 %s, %s, %s, %s offen %s' % (v(o + 8, 4), v(vst), s(R_WS, 4), s(sX0), sc))
        p.I('buffer_store_dwordx4 %s, %s, %s, %s offen %s' % (v(o + 12, 4), v(vst), s(R_WS, 4), s(sX1), sc))
    if not stats: return
    stats_math(p, va, sd, vsa, sc)

def stats_math(p, va, sd, vsa, sc):
    sm = va.get(2, 2); sq = sm + 1; ones = va.get(); r_ = va.get(2, 2)
    p.I('v_mov_b32 %s, 0x3f803f80' % v(ones))
    p.I('v_mov_b32 %s, 0' % v(sm))
    p.I('v_mov_b32 %s, 0' % v(sq))
    for i in range(16):
        p.I('v_dot2_f32_bf16 %s, %s, %s, %s' % (v(sm), v(sd + i), v(ones), v(sm)))
        p.I('v_dot2_f32_bf16 %s, %s, %s, %s' % (v(sq), v(sd + i), v(sd + i), v(sq)))
    for rot in (8, 4, 2, 1):
        p.I('v_add_f32_dpp %s, %s, %s row_ror:%d row_mask:0xf bank_mask:0xf' % (v(sm), v(sm), v(sm), rot))
        p.I('v_add_f32_dpp %s, %s, %s row_ror:%d row_mask:0xf bank_mask:0xf' % (v(sq), v(sq), v(sq), rot))
    p.I('v_mul_f32 %s, 0x%08x, %s' % (v(sm), f32(1.0 / D), v(sm)))
    p.I('v_mul_f32 %s, 0x%08x, %s' % (v(sq), f32(1.0 / D), v(sq)))
    p.I('v_fma_f32 %s, -%s, %s, %s' % (v(sq), v(sm), v(sm), v(sq)))
    p.I('v_max_f32 %s, 0, %s' % (v(sq), v(sq)))
    p.I('v_add_f32 %s, 0x%08x, %s' % (v(sq), f32(1e-5), v(sq)))
    p.I('v_rsq_f32 %s, %s' % (v(r_), v(sq)))
    p.I('v_mul_f32_e64 %s, -%s, %s' % (v(r_ + 1), v(sm), v(r_)))
    p.I('buffer_store_dwordx2 %s, %s, %s, 0 offen %s' % (v(r_, 2), v(vsa), s(R_WS, 4), sc))

def emit_p0(p, va, sc='sc1'):
    R = emit_p0_loads(p, va)
    emit_p0_compute(p, va, R, sc)

import struct
def f32(x):
    return struct.unpack('<I', struct.pack('<f', x))[0]
```

```python
from common import *

FCH = 2096 * 16
LF = 0
LK = 2 * FCH
KCH = 96 * 80
LE = LK + 2 * KCH
P1_LDS_END = LE + 4 * 4096
BQ_TABLE = 0x71352460

def emit_filter_prep(p, va):
    st = emit_filter_loads(p, va)
    emit_filter_build(p, va, st)

def emit_filter_loads(p, va):
    sT, sT2 = 72, 73
    p.C('---- filter copies ----')
    for ch, R in ((0, R_T0), (1, R_T1)):
        p.I('s_lshl_b32 %s, s2, 13' % s(sT))
        if ch: p.I('s_add_u32 %s, %s, 4096' % (s(sT), s(sT)))
        p.I('s_add_u32 %s, %s, %s' % (s(R), s(P_FK), s(sT)))
        p.I('s_addc_u32 %s, %s, 0' % (s(R + 1), s(P_FK + 1)))
        p.I('s_and_b32 %s, %s, 0xffff' % (s(R + 1), s(R + 1)))
        p.I('s_mov_b32 %s, 4096' % s(R + 2))
        p.I('s_mov_b32 %s, 0x20000' % s(R + 3))
    vo = va.get(); vo2 = va.get()
    p.I('v_lshlrev_b32 %s, 4, v0' % v(vo2))
    p.I('v_subrev_u32 %s, 16, %s' % (v(vo), v(vo2)))
    w = [va.get(8, 4), va.get(8, 4)]
    for ch, R in ((0, R_T0), (1, R_T1)):
        p.I('buffer_load_dwordx4 %s, %s, %s, 0 offen' % (v(w[ch], 4), v(vo), s(R, 4)))
        p.I('buffer_load_dwordx4 %s, %s, %s, 0 offen' % (v(w[ch] + 4, 4), v(vo2), s(R, 4)))
    return vo2, w

def emit_filter_build(p, va, st):
    vo2, w = st
    z = va.get(4, 4); za = va.get(); t = va.get()
    for i in range(4): p.I('v_mov_b32 %s, 0' % v(z + i))
    p.I('v_and_b32 %s, 31, v0' % v(za))
    p.I('v_lshrrev_b32 %s, 2, %s' % (v(za), v(za)))
    p.I('v_mul_u32_u24 %s, 262, %s' % (v(za), v(za)))
    p.I('v_and_b32 %s, 3, v0' % v(t))
    p.I('v_add_u32 %s, %s, %s' % (v(za), v(za), v(t)))
    p.I('v_bfe_u32 %s, v0, 5, 1' % v(t))
    p.I('v_mul_u32_u24 %s, %d, %s' % (v(t), FCH // 16, v(t)))
    p.I('v_add_lshl_u32 %s, %s, %s, 4' % (v(za), v(za), v(t)))
    p.I('ds_write_b128 %s, %s offset:%d' % (v(za), v(z, 4), LF))
    p.I('v_bfe_u32 %s, v0, 2, 5' % v(za))
    p.I('v_mul_u32_u24 %s, 80, %s' % (v(za), v(za)))
    p.I('v_and_b32 %s, 3, v0' % v(t))
    p.I('v_lshl_add_u32 %s, %s, 4, %s' % (v(za), v(t), v(za)))
    p.I('v_lshrrev_b32 %s, 7, v0' % v(t))
    p.I('v_mul_u32_u24 %s, %d, %s' % (v(t), KCH, v(t)))
    p.I('v_add_u32 %s, %s, %s' % (v(za), v(za), v(t)))
    p.I('v_add_u32 %s, %d, %s' % (v(za), LK, v(za)))
    p.I('ds_write_b128 %s, %s' % (v(za), v(z, 4)))
    w1 = va.get(6, 2); sA = va.get(6, 2); sB = va.get(6, 2)
    for ch in range(2):
        W = w[ch]
        off = lambda sg: LF + ch * FCH + (262 * sg + 4) * 16
        p.I('ds_write_b128 %s, %s offset:%d' % (v(vo2), v(W + 4, 4), off(0)))
        p.I('ds_write_b128 %s, %s offset:%d' % (v(vo2), v(W + 2, 4), off(4)))
        for i in range(6): p.I('v_mov_b32 %s, %s' % (v(w1 + i), v(W + 1 + i)))
        p.I('ds_write_b128 %s, %s offset:%d' % (v(vo2), v(w1, 4), off(2)))
        p.I('ds_write_b128 %s, %s offset:%d' % (v(vo2), v(w1 + 2, 4), off(6)))
        for i in range(6): p.I('v_alignbit_b32 %s, %s, %s, 16' % (v(sA + i), v(W + i + 1), v(W + i)))
        p.I('ds_write_b128 %s, %s offset:%d' % (v(vo2), v(sA, 4), off(1)))
        p.I('ds_write_b128 %s, %s offset:%d' % (v(vo2), v(sA + 2, 4), off(5)))
        for i in range(6): p.I('v_alignbit_b32 %s, %s, %s, 16' % (v(sB + i), v(W + i + 2), v(W + i + 1)))
        p.I('ds_write_b128 %s, %s offset:%d' % (v(vo2), v(sB, 4), off(3)))
        p.I('ds_write_b128 %s, %s offset:%d' % (v(vo2), v(sB + 2, 4), off(7)))


class P1Regs:
    pass

def emit_p1_addr(p, va):
    R = P1Regs()
    sT, sT2, sCH, sKS = 72, 73, 84, 85
    R.sCH, R.sKS = sCH, sKS
    p.C('---- P1 addresses ----')
    R.aA = va.get(); R.aB = va.get(); R.gX = va.get(); R.gY = va.get(); R.lX = va.get(); R.lY = va.get()
    R.gS = va.get(); R.gS2 = va.get(); R.gH = va.get(); R.ex = va.get(); R.exr = va.get(); R.gD = va.get()
    mark = va.n
    l = va.get(); t = va.get(); t2 = va.get(); b = va.get(); n = va.get(); h = va.get()
    p.I('v_readfirstlane_b32 %s, v0' % s(sT))
    p.I('s_lshr_b32 %s, %s, 7' % (s(sCH), s(sT)))
    p.I('s_bfe_u32 %s, %s, 0x10006' % (s(sKS), s(sT)))
    p.I('v_and_b32 %s, 63, v0' % v(l))
    p.I('v_and_b32 %s, 31, v0' % v(n))
    p.I('v_bfe_u32 %s, v0, 5, 1' % v(h))
    p.I('v_lshrrev_b32 %s, 2, %s' % (v(t), v(n)))
    p.I('v_lshlrev_b32 %s, 2, %s' % (v(t), v(t)))
    p.I('s_mov_b32 %s, 0x%x' % (s(sT), BQ_TABLE))
    p.I('v_lshrrev_b32 %s, %s, %s' % (v(b), v(t), s(sT)) if False else 'v_lshrrev_b32_e64 %s, %s, %s' % (v(b), v(t), s(sT)))
    p.I('v_and_b32 %s, 7, %s' % (v(b), v(b)))
    p.I('v_and_b32 %s, 3, %s' % (v(t), v(n)))
    p.I('v_lshl_add_u32 %s, %s, 2, %s' % (v(b), v(b), v(t)))
    p.I('v_add_u32 %s, 1, %s' % (v(b), v(b)))
    p.I('v_and_b32 %s, 7, %s' % (v(t), v(b)))
    p.I('v_lshrrev_b32 %s, 3, %s' % (v(t2), v(b)))
    p.I('v_mul_u32_u24 %s, 262, %s' % (v(R.aA), v(t)))
    p.I('v_min_u32 %s, 1, %s' % (v(t), v(t)))
    p.I('v_add3_u32 %s, %s, %s, %s' % (v(R.aA), v(R.aA), v(t), v(t2)))
    p.I('v_sub_u32 %s, %s, %s' % (v(R.aA), v(R.aA), v(h)))
    p.I('s_mul_i32 %s, %s, %d' % (s(sT), s(sCH), FCH // 16))
    p.I('s_lshl_b32 %s, %s, 1' % (s(sT2), s(sKS)))
    p.I('s_sub_u32 %s, %s, %s' % (s(sT), s(sT), s(sT2)))
    p.I('s_add_u32 %s, %s, 3' % (s(sT), s(sT)))
    p.I('v_add_lshl_u32 %s, %s, %s, 4' % (v(R.aA), s(sT), v(R.aA)) if False else 'v_add_u32 %s, %s, %s' % (v(R.aA), s(sT), v(R.aA)))
    p.I('v_lshlrev_b32 %s, 4, %s' % (v(R.aA), v(R.aA)))
    p.I('s_mul_i32 %s, %s, %d' % (s(sT), s(sCH), KCH))
    p.I('s_lshl_b32 %s, %s, 5' % (s(sT2), s(sKS)))
    p.I('s_add_u32 %s, %s, %s' % (s(sT), s(sT), s(sT2)))
    p.I('s_add_u32 %s, %s, %d' % (s(sT), s(sT), LK + 80))
    p.I('v_mul_u32_u24 %s, 80, %s' % (v(R.aB), v(n)))
    p.I('v_lshl_add_u32 %s, %s, 4, %s' % (v(R.aB), v(h), v(R.aB)))
    p.I('v_add_u32 %s, %s, %s' % (v(R.aB), s(sT), v(R.aB)))
    uX = b; uY = t2
    p.I('s_lshl_b32 %s, %s, 5' % (s(sT), s(sKS)))
    p.I('v_add_u32 %s, %s, %s' % (v(t), s(sT), v(n)))
    A_ = n
    p.I('v_mov_b32 %s, %s' % (v(A_), v(t)))
    p.I('v_mul_u32_u24 %s, 3, %s' % (v(uX), v(h)))
    p.I('v_sub_u32 %s, 2, %s' % (v(uY), v(h)))
    p.I('s_mul_i32 %s, %s, %d' % (s(sT), s(sCH), KCH))
    p.I('s_add_u32 %s, %s, %d' % (s(sT), s(sT), LK + 32 * 80))
    p.I('v_mul_u32_u24 %s, 80, %s' % (v(t), v(A_)))
    p.I('v_add_u32 %s, %s, %s' % (v(t), s(sT), v(t)))
    p.I('v_lshl_add_u32 %s, %s, 4, %s' % (v(R.lX), v(uX), v(t)))
    p.I('v_lshl_add_u32 %s, %s, 4, %s' % (v(R.lY), v(uY), v(t)))
    p.I('s_lshl_b32 %s, s2, 13' % s(sT))
    p.I('s_lshl_b32 %s, %s, 12' % (s(sT2), s(sCH)))
    p.I('s_add_u32 %s, %s, %s' % (s(sT), s(sT), s(sT2)))
    p.I('v_lshlrev_b32 %s, 6, %s' % (v(t), v(A_)))
    p.I('v_add_u32 %s, %s, %s' % (v(t), s(sT), v(t)))
    p.I('v_lshl_add_u32 %s, %s, 4, %s' % (v(R.gX), v(uX), v(t)))
    p.I('v_lshl_add_u32 %s, %s, 4, %s' % (v(R.gY), v(uY), v(t)))
    p.I('s_lshl_b32 %s, %s, 13' % (s(sT2), s(sKS)))
    p.I('s_add_u32 %s, %s, 0x%x' % (s(sT2), s(sT2), WS_STATS))
    p.I('v_lshlrev_b32 %s, 4, %s' % (v(t), v(l)))
    p.I('v_add_u32 %s, %s, %s' % (v(R.gS), s(sT2), v(t)))
    p.I('v_add_u32 %s, 4096, %s' % (v(R.gS2), v(R.gS)))
    p.I('s_lshl_b32 %s, %s, 11' % (s(sT2), s(sKS)))
    p.I('s_add_u32 %s, %s, %s' % (s(sT), s(sT), s(sT2)))
    p.I('s_add_u32 %s, %s, 0x%x' % (s(sT), s(sT), WS_HT))
    p.I('v_and_b32 %s, 15, %s' % (v(t), v(l)))
    p.I('v_lshlrev_b32 %s, 6, %s' % (v(R.gH), v(t)))
    p.I('v_lshrrev_b32 %s, 4, %s' % (v(t), v(l)))
    p.I('v_lshlrev_b32 %s, 2, %s' % (v(t), v(t)))
    p.I('s_movk_i32 %s, 0x1320' % s(sT2))
    p.I('v_lshrrev_b32_e64 %s, %s, %s' % (v(t), v(t), s(sT2)))
    p.I('v_and_b32 %s, 3, %s' % (v(t), v(t)))
    p.I('v_lshl_add_u32 %s, %s, 4, %s' % (v(R.gH), v(t), v(R.gH)))
    p.I('v_add_u32 %s, %s, %s' % (v(R.gH), s(sT), v(R.gH)))
    p.I('v_lshrrev_b32 %s, 6, v0' % v(t))
    p.I('v_lshlrev_b32 %s, 12, %s' % (v(R.ex), v(t)))
    p.I('v_lshl_add_u32 %s, %s, 4, %s' % (v(R.ex), v(l), v(R.ex)))
    p.I('v_add_u32 %s, %d, %s' % (v(R.ex), LE, v(R.ex)))
    p.I('v_xor_b32 %s, 4096, %s' % (v(R.exr), v(R.ex)))
    p.I('s_lshl_b32 %s, s2, 2' % s(sT))
    p.I('s_lshl_b32 %s, %s, 1' % (s(sT2), s(sCH)))
    p.I('s_add_u32 %s, %s, %s' % (s(sT), s(sT), s(sT2)))
    p.I('v_mov_b32 %s, %s' % (v(R.gD), s(sT)))
    va.n = mark
    return R

def emit_p1_main(p, va, R, sc='sc1', lab='', st_=None, extra=None, budget=5.0, pre_loop=None):
    sT, sKV, sX = 72, 73, 74
    p.C('---- P1: loads ----')
    kX = va.get(4, 4); kY = va.get(4, 4); xX = va.get(4, 4); xY = va.get(4, 4); st = va.get(32, 4); dv = va.get()
    p.I('s_mov_b32 %s, 0x%x' % (s(sKV), WS_KVT))
    p.I('s_mov_b32 %s, 0x%x' % (s(sX), WS_XT))
    p.I('buffer_load_dwordx4 %s, %s, %s, %s offen %s' % (v(kX, 4), v(R.gX), s(R_WS, 4), s(sKV), sc))
    p.I('buffer_load_dwordx4 %s, %s, %s, %s offen %s' % (v(kY, 4), v(R.gY), s(R_WS, 4), s(sKV), sc))
    p.I('buffer_load_dwordx4 %s, %s, %s, %s offen %s' % (v(xX, 4), v(R.gX), s(R_WS, 4), s(sX), sc))
    p.I('buffer_load_dwordx4 %s, %s, %s, %s offen %s' % (v(xY, 4), v(R.gY), s(R_WS, 4), s(sX), sc))
    for i in range(4):
        p.I('buffer_load_dwordx4 %s, %s, %s, 0 offen offset:%d %s' % (v(st + 4 * i, 4), v(R.gS), s(R_WS, 4), 1024 * i, sc))
    for i in range(4):
        p.I('buffer_load_dwordx4 %s, %s, %s, 0 offen offset:%d %s' % (v(st + 16 + 4 * i, 4), v(R.gS2), s(R_WS, 4), 1024 * i, sc))
    p.I('buffer_load_ushort %s, %s, %s, 0 offen' % (v(dv), v(R.gD), s(R_SD, 4)))
    p.I('ds_write_b128 %s, %s' % (v(R.lX), v(kX, 4)))
    p.I('ds_write_b128 %s, %s' % (v(R.lY), v(kY, 4)))
    p.I('s_waitcnt lgkmcnt(0)')
    p.I('s_barrier')
    if pre_loop: pre_loop()
    if st_: st_(p, 3)
    acc = [va.get(16, 4), va.get(16, 4)]
    NS = 4
    fr = va.get(16 * NS, 4)
    def reads(d):
        b = fr + 16 * (d % NS)
        return ['ds_read_b128 %s, %s offset:%d' % (v(b, 4), v(R.aA), 64 * d),
                'ds_read_b128 %s, %s offset:%d' % (v(b + 4, 4), v(R.aB), (31 - d) * 80),
                'ds_read_b128 %s, %s offset:%d' % (v(b + 8, 4), v(R.aB), (31 - d) * 80 + 2560),
                'ds_read_b128 %s, %s offset:%d' % (v(b + 12, 4), v(R.aA), 64 * d + 2048)]
    xf = va.get(16, 2); a1 = va.get(16, 2); kf = va.get(16, 2)
    fill = []
    fill.append('v_lshlrev_b32 %s, 16, %s' % (v(dv), v(dv)))
    for u, (xs, ksrc) in enumerate(((xX, kX), (xY, kY))):
        for i in range(4):
            fill.append('v_lshlrev_b32 %s, 16, %s' % (v(xf + 8 * u + 2 * i), v(xs + i)))
            fill.append('v_and_b32 %s, 0xffff0000, %s' % (v(xf + 8 * u + 2 * i + 1), v(xs + i)))
        for i in range(4):
            fill.append('v_lshlrev_b32 %s, 16, %s' % (v(kf + 8 * u + 7 - 2 * i), v(ksrc + i)))
            fill.append('v_and_b32 %s, 0xffff0000, %s' % (v(kf + 8 * u + 6 - 2 * i), v(ksrc + i)))
    for e in range(16):
        fill.append('v_mul_f32 %s, %s, %s' % (v(kf + e), v(dv), v(kf + e)))
    for e in range(16):
        fill.append('v_fma_f32 %s, %s, %s, %s' % (v(a1 + e), v(xf + e), v(st + 2 * e), v(st + 2 * e + 1)))
    for e in range(16):
        fill.append('v_fma_f32 %s, %s, %s, %s' % (v(xf + e), v(a1 + e), v(kf + e), v(xf + e)))
    p.C('---- P1: Toeplitz MFMA loop ----')
    PRE = NS - 1
    sch = Sched(p, budget)
    qx = sch.add_queue()
    if extra: extra(sch)
    qf = sch.add_queue()
    for l in fill: sch.put(qf, l, earliest=6)
    for d in range(PRE):
        for r in reads(d): p.I(r)
    for d in range(32):
        b = fr + 16 * (d % NS)
        nxt = reads(d + PRE) if d + PRE < 32 else []
        c0 = v(acc[0], 16) if d else '0'
        c1 = v(acc[1], 16) if d else '0'
        mf = ['v_mfma_f32_32x32x16_bf16 %s, %s, %s, %s' % (v(acc[0], 16), v(b, 4), v(b + 4, 4), c0),
              'v_mfma_f32_32x32x16_bf16 %s, %s, %s, %s' % (v(acc[1], 16), v(b, 4), v(b + 8, 4), c1),
              'v_mfma_f32_32x32x16_bf16 %s, %s, %s, %s' % (v(acc[1], 16), v(b + 12, 4), v(b + 4, 4), v(acc[1], 16))]
        for k in range(3):
            p.I(mf[k])
            used = 0.0
            if k < 2:
                for r in nxt[2 * k:2 * k + 2]: p.I(r); used += 1.0
            sch.gap(used)
    left = sch.pending()
    for qq in sch.queues: sch.flush(qq)
    print('P1: filler items left after the last MFMA:', left)
    if st_: st_(p, 4)
    p.C('---- P1: exchange + epilogue ----')
    T = fr
    p.I('s_nop 15')
    p.I('s_cmp_eq_u32 %s, 0' % s(R.sKS))
    p.I('s_cbranch_scc0 L_p1_ks1%s' % lab)
    for variant in range(2):
        own, oth = acc[variant], acc[1 - variant]
        if variant == 1:
            p.L('L_p1_ks1%s' % lab)
        for i in range(4):
            p.I('ds_write_b128 %s, %s offset:%d' % (v(R.ex), v(oth + 4 * i, 4), 1024 * i))
        p.I('s_waitcnt lgkmcnt(0)')
        p.I('s_barrier')
        for i in range(4):
            p.I('ds_read_b128 %s, %s offset:%d' % (v(T + 4 * i, 4), v(R.exr), 1024 * i))
        for i in range(8):
            p.I('v_pk_add_f32 %s, %s, %s' % (v(T + 2 * i, 2), v(T + 2 * i, 2), v(own + 2 * i, 2)))
        if variant == 0:
            p.I('s_branch L_p1_join%s' % lab)
    p.L('L_p1_join%s' % lab)
    regX = [0, 1, 2, 3, 12, 13, 14, 15]
    hX = T + 16
    for i in range(4):
        rx = regX[2 * i]
        p.I('v_pk_fma_f32 %s, %s, %s, %s' % (v(hX + 2 * i, 2), v(a1 + 2 * i, 2), v(T + rx, 2), v(xf + 2 * i, 2)))
    for i in range(4):
        p.I('v_pk_fma_f32 %s, %s, %s, %s' % (v(hX + 8 + 2 * i, 2), v(a1 + 8 + 2 * i, 2), v(T + 4 + 2 * i, 2), v(xf + 8 + 2 * i, 2)))
    PX = T + 32; PY = T + 36
    for i in range(4):
        p.I('v_cvt_pk_bf16_f32 %s, %s, %s' % (v(PX + i), v(hX + 2 * i), v(hX + 2 * i + 1)))
    for i in range(4):
        p.I('v_cvt_pk_bf16_f32 %s, %s, %s' % (v(PY + i), v(hX + 8 + 2 * i), v(hX + 8 + 2 * i + 1)))
    for i in range(4):
        p.I('v_permlane16_swap_b32 %s, %s' % (v(PX + i), v(PY + i)))
    p.I('buffer_store_dwordx4 %s, %s, %s, 0 offen %s' % (v(PX, 4), v(R.gH), s(R_WS, 4), sc))
    p.I('buffer_store_dwordx4 %s, %s, %s, 0 offen offset:1024 %s' % (v(PY, 4), v(R.gH), s(R_WS, 4), sc))
```

```python
from common import *
from p0 import f32

HT_HALF = 448 * 128
L_HT = 0
L_STAT = 2 * HT_HALF
P2_LDS_END = L_STAT + 2048
WBUF = 16384
CS_A = [224, 240]

class R2: pass

def emit_p2_ids(p):
    sT = 72
    p.I('s_and_b32 %s, s2, 7' % s(sT))
    p.I('s_lshr_b32 s73, s2, 3')
    p.I('s_mul_i32 s74, s73, 37')
    p.I('s_lshr_b32 s74, s74, 8')
    p.I('s_mul_i32 s75, s74, 7')
    p.I('s_sub_u32 s75, s73, s75')
    p.I('s_lshr_b32 s86, %s, 1' % s(sT))
    p.I('s_lshl_b32 s86, s86, 2')
    p.I('s_add_u32 s86, s86, s74')
    p.I('s_and_b32 s87, %s, 1' % s(sT))
    p.I('s_mul_i32 s87, s87, 7')
    p.I('s_add_u32 s87, s87, s75')
    p.I('v_readfirstlane_b32 s88, v0')
    p.I('s_lshr_b32 s88, s88, 6')

class WStage:
    def __init__(self, p, va, bases):
        self.p = p
        p.C('---- W staging addresses ----')
        self.vg = vg = va.get(); self.vu = vu = va.get(); b0 = va.get(); b1 = va.get()
        extra = [(va.get(), va.get()) for B in bases if B]
        mark = va.n
        t = va.get(); t2 = va.get()
        p.I('v_and_b32 %s, 63, v0' % v(t))
        p.I('v_lshrrev_b32 %s, 4, %s' % (v(t2), v(t)))
        p.I('v_mul_u32_u24 %s, 3584, %s' % (v(vg), v(t2)))
        p.I('v_bfe_u32 %s, %s, 1, 3' % (v(vu), v(t)))
        p.I('v_xor_b32 %s, %s, %s' % (v(vu), v(vu), v(t2)))
        p.I('v_lshl_add_u32 %s, %s, 5, %s' % (v(vg), v(vu), v(vg)))
        p.I('v_and_b32 %s, 1, %s' % (v(vu), v(t)))
        p.I('v_lshl_add_u32 %s, %s, 4, %s' % (v(vg), v(vu), v(vg)))
        p.I('v_xor_b32 %s, 128, %s' % (v(vu), v(vg)))
        p.I('v_bfe_u32 %s, %s, 2, 2' % (v(t2), v(t)))
        p.I('v_bfe_u32 %s, %s, 4, 1' % (v(b1), v(t)))
        p.I('v_lshl_add_u32 %s, %s, 2, %s' % (v(b0), v(b1), v(t2)))
        p.I('v_xor_b32 %s, s88, %s' % (v(b0), v(b0)))
        p.I('v_lshlrev_b32 %s, 5, %s' % (v(b0), v(b0)))
        p.I('v_lshl_add_u32 %s, %s, 13, %s' % (v(b0), v(b1), v(b0)))
        p.I('v_lshl_add_u32 %s, %s, 8, %s' % (v(b0), v(t2), v(b0)))
        p.I('v_lshrrev_b32 %s, 5, %s' % (v(t2), v(t)))
        p.I('v_lshl_add_u32 %s, %s, 11, %s' % (v(b0), v(t2), v(b0)))
        p.I('v_and_b32 %s, 3, %s' % (v(t2), v(t)))
        p.I('v_lshl_add_u32 %s, %s, 3, %s' % (v(b0), v(t2), v(b0)))
        p.I('v_xor_b32 %s, 128, %s' % (v(b1), v(b0)))
        self.bases = []
        for B in bases:
            assert B % 256 == 0
            if B == 0:
                self.bases.append((0, b0, b1))
            else:
                r0, r1 = extra.pop(0)
                p.I('v_add_u32 %s, %d, %s' % (v(r0), B, v(b0)))
                p.I('v_add_u32 %s, %d, %s' % (v(r1), B, v(b1)))
                self.bases.append((B, r0, r1))
        va.n = mark
        p.I('s_mul_i32 s95, s88, %d' % (8 * 3584))
        p.I('s_lshl_b32 s72, s87, 8')
        p.I('s_add_u32 s95, s95, s72')
        p.I('s_lshl_b32 s94, s88, 11')
    def dma(self, st, lds):
        p = self.p
        for up in range(2):
            for i in range(2):
                p.I('s_add_u32 m0, s94, %d' % (lds + up * 8192 + i * 1024))
                p.I('s_add_u32 s72, s95, %d' % ((32 * st + 4 * i) * 3584))
                p.I('buffer_load_dwordx4 %s, %s, s72 offen lds' % (v(self.vu if up else self.vg), s((R_WU if up else R_WG), 4)), tag='w%d' % st)
    def reads(self, st, lds):
        p = self.p
        B, r0, r1 = max((b for b in self.bases if b[0] <= lds), key=lambda b: b[0])
        off = lds - B
        assert off + 16384 <= 65536
        for kk in range(2):
            for pp in range(2):
                k = 2 * st + kk
                for rho in range(2):
                    p.I('ds_read_b64_tr_b16 %s, %s offset:%d' % (a((pp * 28 + k) * 4 + 2 * rho, 2), v(r1 if pp else r0), off + (16 * kk + 4 * rho) * 256))
    def csum(self, st, ones):
        p = self.p
        for kk in range(2):
            for pp in range(2):
                k = 2 * st + kk
                p.I('v_mfma_f32_32x32x16_bf16 %s, %s, %s, %s' % (a(CS_A[pp], 16), a((pp * 28 + k) * 4, 4), v(ones, 4), a(CS_A[pp], 16) if k else '0'))
    def process(self, stages, lds_of, ones, refill=None):
        p = self.p
        prev = None
        for st in stages:
            p.waitvm('w%d' % st)
            p.I('s_waitcnt lgkmcnt(0)')
            p.I('s_barrier')
            if refill: refill(st)
            self.reads(st, lds_of(st))
            if prev is not None and ones is not None: self.csum(prev, ones)
            prev = st
        if ones is not None: self.csum(prev, ones)
        p.I('s_waitcnt lgkmcnt(0)')

class WPriv:
    def __init__(self, p, va, bases):
        self.p = p
        p.C('---- W staging addresses (wave private) ----')
        self.vg = vg = va.get(); self.vu = vu = va.get()
        regs = [(va.get(), va.get()) for _ in bases]
        mark = va.n
        t = va.get(); t2 = va.get(); b0 = va.get()
        p.I('v_and_b32 %s, 63, v0' % v(t))
        p.I('v_lshrrev_b32 %s, 2, %s' % (v(t2), v(t)))
        p.I('v_mul_u32_u24 %s, 3584, %s' % (v(vg), v(t2)))
        p.I('v_and_b32 %s, 3, %s' % (v(t2), v(t)))
        p.I('v_lshl_add_u32 %s, %s, 4, %s' % (v(vg), v(t2), v(vg)))
        p.I('v_xor_b32 %s, 32, %s' % (v(vu), v(vg)))
        p.I('v_bfe_u32 %s, %s, 4, 1' % (v(t2), v(t)))
        p.I('v_mul_u32_u24 %s, 2080, %s' % (v(b0), v(t2)))
        p.I('v_lshrrev_b32 %s, 5, %s' % (v(t2), v(t)))
        p.I('v_lshl_add_u32 %s, %s, 9, %s' % (v(b0), v(t2), v(b0)))
        p.I('v_bfe_u32 %s, %s, 2, 2' % (v(t2), v(t)))
        p.I('v_lshl_add_u32 %s, %s, 6, %s' % (v(b0), v(t2), v(b0)))
        p.I('v_and_b32 %s, 3, %s' % (v(t2), v(t)))
        p.I('v_lshl_add_u32 %s, %s, 3, %s' % (v(b0), v(t2), v(b0)))
        self.bases = []
        for (B, per), (r0, r1) in zip(bases, regs):
            assert B % 64 == 0 and per % 64 == 0
            p.I('s_mul_i32 s72, s88, %d' % per)
            p.I('s_add_u32 s72, s72, %d' % B)
            p.I('v_add_u32 %s, s72, %s' % (v(r0), v(b0)))
            p.I('v_xor_b32 %s, 32, %s' % (v(r1), v(r0)))
            self.bases.append((B, per, r0, r1))
        va.n = mark
        p.I('s_lshl_b32 s95, s87, 8')
        p.I('s_lshl_b32 s72, s88, 6')
        p.I('s_add_u32 s95, s95, s72')
        self.sb = [94, 81]
        for k, (B, per, r0, r1) in enumerate(self.bases):
            p.I('s_mul_i32 s%d, s88, %d' % (self.sb[k], per))
            p.I('s_add_u32 s%d, s%d, %d' % (self.sb[k], self.sb[k], B))
    def dma_lines(self, st, slot):
        reg, idx = slot
        out = []
        for up in range(2):
            for i in range(2):
                out.append(['s_add_u32 m0, s%d, %d' % (self.sb[reg], idx * 4096 + up * 2048 + i * 1024),
                            's_add_u32 s72, s95, %d' % ((32 * st + 16 * i) * 3584),
                            'buffer_load_dwordx4 %s, %s, s72 offen lds' % (v(self.vu if up else self.vg), s((R_WU if up else R_WG), 4))])
        return out
    def read_lines(self, st, slot):
        reg, idx = slot
        B, per, r0, r1 = self.bases[reg]
        out = []
        for kk in range(2):
            for pp in range(2):
                k = 2 * st + kk
                for rho in range(2):
                    out.append('ds_read_b64_tr_b16 %s, %s offset:%d' % (a((pp * 28 + k) * 4 + 2 * rho, 2), v(r1 if pp else r0), idx * 4096 + (16 * kk + 4 * rho) * 64))
        return out
    def dma(self, st, slot):
        for g in self.dma_lines(st, slot):
            for l in g: self.p.I(l, tag='w%d' % st)
    def reads(self, st, slot):
        for l in self.read_lines(st, slot): self.p.I(l, tag='r%d' % st)

def emit_w_stage(p, va, lbase, NB=4, colsum=None, st0=0, st1=14):
    W = WStage(p, va, [lbase])
    lds = lambda st: lbase + (st % NB) * WBUF
    for st in range(st0, min(st0 + NB - 1, st1)): W.dma(st, lds(st))
    W.process(range(st0, st1), lds, colsum[1], refill=lambda st: W.dma(st + NB - 1, lds(st + NB - 1)) if st + NB - 1 < st1 else None)

def emit_cs_copy(p, va):
    cs = [va.get(16, 4), va.get(16, 4)]
    for pp in range(2):
        for i in range(16):
            p.I('v_accvgpr_read_b32 %s, %s' % (v(cs[pp] + i), a(CS_A[pp] + i)))
    return cs

def emit_ht_dma(p, va, sc='sc1'):
    sSO, sT, sB = 72, 73, 74
    p.C('---- hT tile -> LDS ----')
    vo = va.get(); t = va.get(); t2 = va.get()
    p.I('v_and_b32 %s, 63, v0' % v(t))
    p.I('v_lshrrev_b32 %s, 3, %s' % (v(t2), v(t)))
    p.I('v_lshlrev_b32 %s, 12, %s' % (v(vo), v(t2)))
    p.I('v_bfe_u32 %s, %s, 2, 1' % (v(t2), v(t)))
    p.I('v_lshrrev_b32 %s, 4, %s' % (v(t), v(t)))
    p.I('v_xor_b32 %s, %s, %s' % (v(t2), v(t2), v(t)))
    p.I('v_and_b32 %s, 1, %s' % (v(t2), v(t2)))
    p.I('v_lshl_add_u32 %s, %s, 6, %s' % (v(vo), v(t2), v(vo)))
    p.I('v_and_b32 %s, 3, v0' % v(t2))
    p.I('v_lshl_add_u32 %s, %s, 4, %s' % (v(vo), v(t2), v(vo)))
    p.I('s_lshl_b32 %s, s86, 8' % s(sB))
    p.I('s_lshl_b32 %s, s88, 15' % s(sT))
    p.I('s_add_u32 %s, %s, %s' % (s(sB), s(sB), s(sT)))
    p.I('s_add_u32 %s, %s, 0x%x' % (s(sB), s(sB), WS_HT))
    p.I('s_lshl_b32 %s, s88, 10' % s(sT))
    for half in range(2):
        for i in range(14):
            p.I('s_add_u32 m0, %s, %d' % (s(sT), L_HT + half * HT_HALF + i * 4096))
            p.I('s_add_u32 %s, %s, %d' % (s(sSO), s(sB), half * 128 + i * 32 * 4096))
            p.I('buffer_load_dwordx4 %s, %s, %s offen %s lds' % (v(vo), s(R_WS, 4), s(sSO), sc), tag='ht%d' % half)

def emit_b_addr(p, va):
    R = R2()
    R.b = [[va.get(), va.get()], [va.get(), va.get()]]
    mark = va.n
    t = va.get(); t2 = va.get()
    b = R.b[0][0]
    p.I('v_and_b32 %s, 63, v0' % v(t))
    p.I('v_bfe_u32 %s, %s, 2, 2' % (v(t2), v(t)))
    p.I('v_lshlrev_b32 %s, 7, %s' % (v(b), v(t2)))
    p.I('v_lshrrev_b32 %s, 5, %s' % (v(t2), v(t)))
    p.I('v_lshl_add_u32 %s, %s, 10, %s' % (v(b), v(t2), v(b)))
    p.I('v_bfe_u32 %s, %s, 3, 1' % (v(t2), v(t)))
    p.I('v_lshl_add_u32 %s, %s, 6, %s' % (v(b), v(t2), v(b)))
    p.I('v_bfe_u32 %s, %s, 4, 1' % (v(t2), v(t)))
    p.I('v_lshl_add_u32 %s, %s, 5, %s' % (v(b), v(t2), v(b)))
    p.I('v_and_b32 %s, 3, %s' % (v(t2), v(t)))
    p.I('v_lshl_add_u32 %s, %s, 3, %s' % (v(b), v(t2), v(b)))
    if L_HT: p.I('v_add_u32 %s, %d, %s' % (v(b), L_HT, v(b)))
    p.I('v_xor_b32 %s, 64, %s' % (v(R.b[0][1]), v(b)))
    p.I('v_add_u32 %s, %d, %s' % (v(R.b[1][0]), HT_HALF, v(b)))
    p.I('v_add_u32 %s, %d, %s' % (v(R.b[1][1]), HT_HALF, v(R.b[0][1])))
    va.n = mark
    return R

def bread(dst, R, sig, k):
    base = R.b[sig >> 1][sig & 1]
    return ['ds_read_b64_tr_b16 %s, %s offset:%d' % (v(dst + 2 * rho, 2), v(base), (16 * k + 4 * rho) * 128) for rho in range(2)]

def emit_stats(p, va, R):
    p.C('---- LN2 stats ----')
    R.m = [va.get() for _ in range(4)]; R.r = [va.get() for _ in range(4)]; R.al = [va.get() for _ in range(4)]
    mark = va.n
    sm = va.get(2, 2); sq = sm + 1; ones = va.get(); base = va.get(); t = va.get(); t2 = va.get(); fr = va.get(16, 4); sa = va.get()
    p.I('s_and_b32 s72, s88, 1')
    p.I('s_lshl_b32 s72, s72, 6')
    p.I('v_xor_b32 %s, s72, %s' % (v(base), v(R.b[0][0])))
    p.I('s_lshr_b32 s72, s88, 1')
    p.I('s_mul_i32 s72, s72, %d' % HT_HALF)
    p.I('v_add_u32 %s, s72, %s' % (v(base), v(base)))
    p.I('v_mov_b32 %s, 0x3f803f80' % v(ones))
    p.I('v_mov_b32 %s, 0' % v(sm))
    p.I('v_mov_b32 %s, 0' % v(sq))
    def rd(k):
        for rho in range(2):
            p.I('ds_read_b64_tr_b16 %s, %s offset:%d' % (v(fr + 4 * (k % 4) + 2 * rho, 2), v(base), (16 * k + 4 * rho) * 128))
    for k in range(3): rd(k)
    for k in range(28):
        if k + 3 < 28: rd(k + 3)
        for i in range(4):
            p.I('v_dot2_f32_bf16 %s, %s, %s, %s' % (v(sm), v(fr + 4 * (k % 4) + i), v(ones), v(sm)))
            p.I('v_dot2_f32_bf16 %s, %s, %s, %s' % (v(sq), v(fr + 4 * (k % 4) + i), v(fr + 4 * (k % 4) + i), v(sq)))
    for x in (sm, sq):
        p.I('v_mov_b32 %s, %s' % (v(t), v(x)))
        p.I('v_permlane32_swap_b32 %s, %s' % (v(t), v(x)))
        p.I('v_add_f32 %s, %s, %s' % (v(x), v(x), v(t)))
    p.I('v_mul_f32 %s, 0x%08x, %s' % (v(sm), f32(1.0 / D), v(sm)))
    p.I('v_mul_f32 %s, 0x%08x, %s' % (v(sq), f32(1.0 / D), v(sq)))
    p.I('v_fma_f32 %s, -%s, %s, %s' % (v(sq), v(sm), v(sm), v(sq)))
    p.I('v_max_f32 %s, 0, %s' % (v(sq), v(sq)))
    p.I('v_add_f32 %s, 0x%08x, %s' % (v(sq), f32(1e-5), v(sq)))
    p.I('v_rsq_f32 %s, %s' % (v(sq), v(sq)))
    p.I('v_and_b32 %s, 31, v0' % v(t))
    p.I('v_lshlrev_b32 %s, 3, %s' % (v(t), v(t)))
    p.I('s_lshl_b32 s72, s88, 8')
    p.I('v_add_u32 %s, s72, %s' % (v(sa), v(t)))
    p.I('v_add_u32 %s, %d, %s' % (v(sa), L_STAT, v(sa)))
    p.I('ds_write_b64 %s, %s' % (v(sa), v(sm, 2)))
    p.I('v_add_u32 %s, %d, %s' % (v(t), L_STAT, v(t)))
    p.I('s_waitcnt lgkmcnt(0)')
    p.I('s_barrier')
    for sig in range(4):
        p.I('ds_read_b64 %s, %s offset:%d' % (v(fr + 2 * sig, 2), v(t), 256 * sig))
    for sig in range(4):
        p.I('v_mov_b32 %s, %s' % (v(R.m[sig]), v(fr + 2 * sig)))
        p.I('v_mov_b32 %s, %s' % (v(R.r[sig]), v(fr + 2 * sig + 1)))
        p.I('v_mul_f32 %s, 0x%08x, %s' % (v(R.al[sig]), f32(-1.4426950408889634), v(fr + 2 * sig + 1)))
    va.n = mark

TW = 1
def epilogue(acc, cs, R, sig, pp, tmp, gst, soff, sc, pstride=None):
    L = []
    m, r, al = R.m[sig], R.r[sig], R.al[sig]
    x = tmp; o = tmp + 8; pk = tmp + 16
    for j in range(8):
        L.append('v_fma_f32 %s, -%s, %s, %s' % (v(x + j), v(m), v(cs + j), v(acc + j)))
    for j in range(8):
        L.append('v_mul_f32 %s, %s, %s' % (v(x + j), v(al), v(x + j)))
    for j in range(8):
        L.append('v_fma_f32 %s, -%s, %s, %s' % (v(o + j), v(m), v(cs + 8 + j), v(acc + 8 + j)))
    for j in range(8):
        L.append('v_exp_f32 %s, %s' % (v(x + j), v(x + j)))
    for j in range(8):
        L.append('v_mul_f32 %s, %s, %s' % (v(o + j), v(r), v(o + j)))
    for j in range(8):
        L.append('v_add_f32 %s, 1.0, %s' % (v(x + j), v(x + j)))
    for j in range(8):
        L.append('v_rcp_f32 %s, %s' % (v(x + j), v(x + j)))
    for j in range(8):
        L.append('v_mul_f32 %s, %s, %s' % (v(o + j), v(x + j), v(o + j)))
    for i in range(4):
        L.append('v_cvt_pk_bf16_f32 %s, %s, %s' % (v(pk + i), v(o + 2 * i), v(o + 2 * i + 1)))
    L.append('s_add_u32 %s, %s, %d' % (s(soff), s(89), (sig * 112 + (4 if TW == 1 else 1) * pp) * 1024))
    L.append('buffer_store_dwordx4 %s, %s, %s, %s offen %s' % (v(pk, 4), v(gst), s(R_WS, 4), s(soff), sc))
    return L

def emit_p2_main(p, va, R, cs, sc='sc1', st_=None):
    p.C('---- P2 main ----')
    acc = [[va.get(16, 4), va.get(16, 4)], [va.get(16, 4), va.get(16, 4)]]
    NF = 4
    fr = va.get(4 * NF, 4)
    tmp = va.get(20, 4); tmp2 = va.get(20, 4); gst = va.get()
    p.I('s_mul_i32 s89, s86, %d' % (4 * 112))
    p.I('s_lshl_b32 s72, s87, 3')
    p.I('s_add_u32 s89, s89, s72')
    p.I('s_add_u32 s89, s89, s88')
    p.I('s_lshl_b32 s89, s89, 10')
    p.I('s_add_u32 s89, s89, 0x%x' % WS_HH)
    p.I('v_and_b32 %s, 63, v0' % v(gst))
    p.I('v_lshlrev_b32 %s, 4, %s' % (v(gst), v(gst)))
    seq = [(sig, k) for sig in range(4) for k in range(28)]
    PRE = NF - 1
    def rd(i):
        sig, k = seq[i]
        return bread(fr + 4 * (i % NF), R, sig, k)
    for i in range(PRE):
        for x in rd(i): p.I(x)
    pend = []
    for i, (sig, k) in enumerate(seq):
        A = acc[sig & 1]
        if k == 0 and sig > 0:
            pend = epilogue(acc[(sig - 1) & 1][0], cs[0], R, sig - 1, 0, tmp, gst, 72, sc) + epilogue(acc[(sig - 1) & 1][1], cs[1], R, sig - 1, 1, tmp2, gst, 73, sc)
            pi = 0
        b = fr + 4 * (i % NF)
        nxt = rd(i + PRE) if i + PRE < len(seq) else []
        for pp in range(2):
            p.I('v_mfma_f32_32x32x16_bf16 %s, %s, %s, %s' % (v(A[pp], 16), a((pp * 28 + k) * 4, 4), v(b, 4), v(A[pp], 16) if k else '0'))
            if nxt: p.I(nxt[pp])
            if pend and k >= 1:
                n = 3
                for x in pend[pi:pi + n]: p.I(x)
                pi += n
        if k == 27 and pend:
            for x in pend[pi:]: p.I(x)
            pend = []
    if st_: st_(p, 5)
    for x in epilogue(acc[1][0], cs[0], R, 3, 0, tmp, gst, 72, sc) + epilogue(acc[1][1], cs[1], R, 3, 1, tmp2, gst, 73, sc): p.I(x)


class HtDma:
    def __init__(self, p, va, sc='sc1'):
        self.p = p; self.sc = sc
        self.vo = vo = va.get()
        mark = va.n
        t = va.get(); t2 = va.get()
        p.I('v_and_b32 %s, 63, v0' % v(t))
        p.I('v_lshrrev_b32 %s, 3, %s' % (v(t2), v(t)))
        p.I('v_lshlrev_b32 %s, 12, %s' % (v(vo), v(t2)))
        p.I('v_bfe_u32 %s, %s, 2, 1' % (v(t2), v(t)))
        p.I('v_lshrrev_b32 %s, 4, %s' % (v(t), v(t)))
        p.I('v_xor_b32 %s, %s, %s' % (v(t2), v(t2), v(t)))
        p.I('v_and_b32 %s, 1, %s' % (v(t2), v(t2)))
        p.I('v_lshl_add_u32 %s, %s, 6, %s' % (v(vo), v(t2), v(vo)))
        p.I('v_and_b32 %s, 3, v0' % v(t2))
        p.I('v_lshl_add_u32 %s, %s, 4, %s' % (v(vo), v(t2), v(vo)))
        va.n = mark
        p.I('s_lshl_b32 s76, s86, 8')
        p.I('s_lshl_b32 s72, s88, 15')
        p.I('s_add_u32 s76, s76, s72')
        p.I('s_add_u32 s76, s76, 0x%x' % WS_HT)
        p.I('s_lshl_b32 s77, s88, 10')
    def lines(self, half, i):
        return ['s_add_u32 m0, s77, %d' % (L_HT + half * HT_HALF + i * 4096),
                's_add_u32 s72, s76, %d' % (half * 128 + i * 32 * 4096),
                'buffer_load_dwordx4 %s, %s, s72 offen %s lds' % (v(self.vo), s(R_WS, 4), self.sc)]
    @staticmethod
    def tag(half, i):
        return 'ht%d_%d' % (half, i // 2 if half == 0 else 0)


def emit_cs_loads(p, va, sc='sc1'):
    import helper
    cs = [va.get(16, 4), va.get(16, 4)]
    t = va.get()
    p.I('v_bfe_u32 %s, v0, 5, 1' % v(t))
    p.I('v_lshlrev_b32 %s, 4, %s' % (v(t), v(t)))
    p.I('s_lshl_b32 s72, s87, 7')
    p.I('s_mul_i32 s73, s88, %d' % (16 * TW))
    p.I('s_add_u32 s72, s72, s73')
    p.I('s_lshl_b32 s72, s72, 2')
    p.I('s_add_u32 s72, s72, 0x%x' % helper.WS_CS)
    p.I('v_add_u32 %s, s72, %s' % (v(t), v(t)))
    p.I('s_movk_i32 s73, %d' % (1792 * 4))
    ps = (64 if TW == 1 else 16) * 4
    for pp in range(2):
        for up in range(2):
            for i in range(2):
                p.I('buffer_load_dwordx4 %s, %s, %s, %s offen offset:%d %s' % (v(cs[pp] + 8 * up + 4 * i, 4), v(t), s(R_WS, 4), 's73' if up else '0', pp * ps + i * 32, sc))
    return cs

def emit_p2_pipe(p, va, R, cs, H, s_tag, sc='sc1', st_=None, budget=5.0, extra=None, spin_max=400000):
    import helper
    p.C('---- P2 pipelined ----')
    NUP = 8
    for i in range(NUP):
        for l in H.lines(0, i): p.I(l, tag=H.tag(0, i))
    acc = [[va.get(16, 4), va.get(16, 4)] for _ in range(4)]
    NF = 4
    fr = va.get(4 * NF, 4)
    tmp = va.get(20, 4)
    gr = va.get(16, 4); ga = va.get(); gst = va.get()
    R.m = [gr + 4 * i for i in range(4)]; R.r = [gr + 4 * i + 1 for i in range(4)]; R.al = [gr + 4 * i + 2 for i in range(4)]
    p.I('s_mul_i32 s89, s86, %d' % (4 * 112))
    p.I('s_lshl_b32 s72, s87, 3')
    p.I('s_add_u32 s89, s89, s72')
    p.I('s_mul_i32 s72, s88, %d' % TW)
    p.I('s_add_u32 s89, s89, s72')
    p.I('s_lshl_b32 s89, s89, 10')
    p.I('s_add_u32 s89, s89, 0x%x' % WS_HH)
    p.I('v_and_b32 %s, 63, v0' % v(gst))
    p.I('v_lshlrev_b32 %s, 4, %s' % (v(gst), v(gst)))
    p.I('v_and_b32 %s, 31, v0' % v(ga))
    p.I('v_lshlrev_b32 %s, 4, %s' % (v(ga), v(ga)))
    p.I('s_lshl_b32 s72, s86, 11')
    p.I('s_add_u32 s72, s72, 0x%x' % helper.WS_ST2)
    p.I('v_add_u32 %s, s72, %s' % (v(ga), v(ga)))
    sch = Sched(p, budget)
    qd = sch.add_queue()
    q = sch.add_queue()
    for n, i in enumerate(range(NUP, 14)): sch.put(qd, H.lines(0, i), earliest=2 * n, tag=H.tag(0, i))
    for i in range(14): sch.put(qd, H.lines(1, i), earliest=12 + 2 * i, tag=H.tag(1, i))
    gl = ['buffer_load_dwordx4 %s, %s, %s, 0 offen offset:%d %s' % (v(gr + 4 * i, 4), v(ga), s(R_WS, 4), 512 * i, sc) for i in range(4)]
    def check(p_):
        def test():
            for i in range(4):
                p.I('v_xor_b32 %s, s%d, %s' % (v(tmp + i), s_tag, v(gr + 4 * i + 3)))
            p.I('v_or3_b32 %s, %s, %s, %s' % (v(tmp), v(tmp), v(tmp + 1), v(tmp + 2)))
            p.I('v_or_b32 %s, %s, %s' % (v(tmp), v(tmp), v(tmp + 3)))
            p.I('v_cmp_ne_u32 vcc, 0, %s' % v(tmp))
        p.I('s_waitcnt vmcnt(0)')
        test()
        p.I('s_mov_b32 s101, 0')
        p.keep(); p.I('s_cbranch_vccz L_st2_ok')
        p.keep(); p.L('L_st2_spin')
        for l in gl: p.I(l)
        p.I('s_waitcnt vmcnt(0)')
        test()
        p.I('s_add_u32 s101, s101, 1')
        p.I('s_cmp_gt_u32 s101, %d' % spin_max)
        p.keep(); p.I('s_cbranch_scc1 L_st2_ok')
        p.keep(); p.I('s_cbranch_vccnz L_st2_spin')
        p.keep(); p.L('L_st2_ok')
        if st_: st_(p, 11)
    S1, S2 = R.S1, R.S2
    sch.put(q, ['@waitvm ht1_0', 's_barrier'], S1 - 2)
    for l in gl: sch.put(q, l, S1)
    sch.put(q, check, S2)
    for i in range(4):
        sch.put(q, 'v_mul_f32 %s, 0x%08x, %s' % (v(R.al[i]), f32(-1.4426950408889634), v(R.r[i])), S2)
    marks = {}
    for sg in range(3):
        for pp in range(2):
            for l in epilogue(acc[sg][pp], cs[pp], R, sg, pp, tmp, gst, 73, sc):
                sch.put(q, l, max(S2, 56 * (sg + 1) + 4))
    if extra: extra(sch)
    seq = [(sig, k) for sig in range(4) for k in range(28)]
    PRE = NF - 1
    def rd(i):
        sig, k = seq[i]
        return bread(fr + 4 * (i % NF), R, sig, k)
    def chunk_gate(i):
        sig, k = seq[i]
        if sig == 0 and k % 4 == 0:
            p.waitvm('ht0_%d' % (k // 4))
            p.I('s_barrier')
    for i in range(PRE):
        chunk_gate(i)
        for x in rd(i): p.I(x)
    for i, (sig, k) in enumerate(seq):
        A = acc[sig]
        b = fr + 4 * (i % NF)
        nxt = rd(i + PRE) if i + PRE < len(seq) else []
        for pp in range(2):
            p.I('v_mfma_f32_32x32x16_bf16 %s, %s, %s, %s' % (v(A[pp], 16), a((pp * 28 + k) * 4, 4), v(b, 4), v(A[pp], 16) if k else '0'))
            used = 0.0
            if nxt:
                if pp == 0: chunk_gate(i + PRE)
                p.I(nxt[pp]); used = 1.0
            sch.gap(used)
    left = sch.pending()
    if st_: st_(p, 12)
    for qq in sch.queues: sch.flush(qq)
    print('P2 pipe: filler items left after the last MFMA:', left)
    for pp in range(2):
        for l in epilogue(acc[3][pp], cs[pp], R, 3, pp, tmp, gst, 73, sc): p.I(l)
```

```python
import sys
from common import *
import p0, p1, p2, p3, helper

FLAG_A = WS_FLAGS
FLAG_B = WS_FLAGS + 0x8000
FLAG_C = WS_FLAGS + 0x10000
S_TAG = 93
SPIN_MAX = 400000
NGRID = 256

def flag_regs(p, va):
    vflag = va.get(); vpoll = va.get(); t = va.get()
    p.I('s_lshr_b32 s72, s2, 3')
    p.I('s_lshl_b32 s72, s72, 7')
    p.I('s_and_b32 s73, s2, 7')
    p.I('s_lshl_b32 s74, s73, 2')
    p.I('s_add_u32 s72, s72, s74')
    p.I('v_lshlrev_b32 %s, 12, v0' % v(vflag))
    p.I('v_add_u32 %s, s72, %s' % (v(vflag), v(vflag)))
    p.I('v_mov_b32 %s, 0x%x' % (v(t), OOB))
    p.I('v_cmp_gt_u32 vcc, 8, v0')
    p.I('v_cndmask_b32 %s, %s, %s, vcc' % (v(vflag), v(t), v(vflag)))
    p.I('v_and_b32 %s, 63, v0' % v(t))
    p.I('v_min_u32 %s, 55, %s' % (v(t), v(t)))
    p.I('v_lshrrev_b32 %s, 1, %s' % (v(vpoll), v(t)))
    p.I('v_lshlrev_b32 %s, 7, %s' % (v(vpoll), v(vpoll)))
    p.I('v_and_b32 %s, 1, %s' % (v(t), v(t)))
    p.I('v_lshl_add_u32 %s, %s, 4, %s' % (v(vpoll), v(t), v(vpoll)))
    p.I('s_lshl_b32 s73, s73, 12')
    p.I('v_add_u32 %s, s73, %s' % (v(vpoll), v(vpoll)))
    return vflag, vpoll

def signal(p, voff, base, tmp, cnt=0):
    p.I('s_waitcnt vmcnt(%d)' % cnt)
    p.I('s_barrier')
    p.I('s_mov_b32 s100, 0x%x' % base)
    p.I('v_mov_b32 %s, s%d' % (v(tmp), S_TAG))
    p.I('buffer_store_dword %s, %s, %s, s100 offen sc1' % (v(tmp), v(voff), s(R_WS, 4)))

def poll(p, name, voff, base, tmp, wide=True):
    p.I('s_cmp_lg_u32 s88, 0')
    p.push()
    p.keep(); p.I('s_cbranch_scc1 L_%s_done' % name)
    p.I('s_mov_b32 s100, 0x%x' % base)
    p.I('s_mov_b32 s101, 0')
    p.I('s_waitcnt vmcnt(0)')
    p.keep(); p.L('L_%s_loop' % name)
    if wide:
        p.I('buffer_load_dwordx4 %s, %s, %s, s100 offen sc1' % (v(tmp, 4), v(voff), s(R_WS, 4)))
        for i in range(4):
            p.I('v_xor_b32 %s, s%d, %s' % (v(tmp + i), S_TAG, v(tmp + i)))
        p.I('v_or3_b32 %s, %s, %s, %s' % (v(tmp), v(tmp), v(tmp + 1), v(tmp + 2)))
        p.I('v_or_b32 %s, %s, %s' % (v(tmp), v(tmp), v(tmp + 3)))
    else:
        p.I('buffer_load_dword %s, %s, %s, s100 offen sc1' % (v(tmp), v(voff), s(R_WS, 4)))
        p.I('v_xor_b32 %s, s%d, %s' % (v(tmp), S_TAG, v(tmp)))
    p.I('v_cmp_ne_u32 vcc, 0, %s' % v(tmp))
    p.I('s_add_u32 s101, s101, 1')
    p.I('s_cmp_gt_u32 s101, %d' % SPIN_MAX)
    p.keep(); p.I('s_cbranch_scc1 L_%s_done' % name)
    p.keep(); p.I('s_cbranch_vccnz L_%s_loop' % name)
    p.pop()
    p.keep(); p.L('L_%s_done' % name)
    p.I('s_barrier')

def build(stamps=False, fname=None, opts=None):
    o = dict(prefetch_code=True, touch=True, nA=3, budget=6.0, S1=90, S2=112, np1=7, w0=4, wstep=12, budget1=5.0)
    o.update(opts or {})
    ST = stamp if stamps else (lambda p, i: None)
    p = Prog(); name = KNAME + '_kernel'; p.name = name
    p.I('s_cmp_ge_u32 s2, %d' % NGRID)
    p.I('s_cbranch_scc1 L_end')
    if stamps: stamp_take(p)
    load_kernargs(p)
    LIM = 250 if stamps else 256
    glob = Alloc(1, LIM)
    vdummy = glob.get()
    vtmp = glob.get(4, 4)
    if o['prefetch_code']:
        p.I('s_getpc_b64 s[94:95]')
        p.keep(); p.L('L_pc')
        p.I('v_lshlrev_b32 %s, 7, v0' % v(vtmp))
        p.I('v_min_u32 %s, L_end-L_pc, %s' % (v(vtmp), v(vtmp)))
        p.I('v_mov_b32 %s, s95' % v(vtmp + 1))
        p.I('v_add_co_u32 %s, vcc, s94, %s' % (v(vtmp), v(vtmp)))
        p.I('v_addc_co_u32 %s, vcc, 0, %s, vcc' % (v(vtmp + 1), v(vtmp + 1)))
        p.I('global_load_dword %s, %s, off' % (v(vdummy), v(vtmp, 2)))
    p.I('s_waitcnt lgkmcnt(0)')
    srd(p, R_K, P_K, S * D * 2); srd(p, R_V, P_V, S * D * 2); srd(p, R_Q, P_Q, S * D * 2)
    srd(p, R_SH, P_SH, D * 8)
    if stamps:
        srd(p, R_WS, P_WS, WS_END)
        stamp_init(p, 0); stamp_put(p, 0); stamp(p, 1)
    vflag = None
    base0 = glob.n + 7
    p.I('s_cmp_ge_u32 s2, %d' % NWG)
    p.keep()
    p.I('s_cbranch_scc1 L_helper')
    va = Alloc(base0, LIM)
    R0 = p0.emit_p0_loads(p, va, stats=False)
    ST(p, 20)
    fst = p1.emit_filter_loads(p, va)
    srd(p, R_WS, P_WS, WS_END); srd(p, R_SD, P_SD, D * 2)
    srd(p, R_WG, P_WG, D * F * 2); srd(p, R_WU, P_WU, D * F * 2); srd(p, R_WD, P_WD, D * F * 2); srd(p, R_OUT, P_OUT, S * D * 2)
    vepoch = glob.get()
    p.I('v_mov_b32 %s, 0' % v(vtmp))
    p.I('buffer_load_dword %s, %s, %s, 0 offen sc1' % (v(vepoch), v(vtmp), s(R_WS, 4)))
    vd2 = vdummy
    vflag, vpoll = flag_regs(p, glob)
    vflagC = glob.get(); vpollC = glob.get(); vpollA = glob.get()
    def pollA_reg():
        p.I('v_and_b32 %s, 63, v0' % v(vtmp))
        p.I('v_lshrrev_b32 %s, 1, %s' % (v(vpollA), v(vtmp)))
        p.I('v_lshlrev_b32 %s, 7, %s' % (v(vpollA), v(vpollA)))
        p.I('v_and_b32 %s, 1, %s' % (v(vtmp), v(vtmp)))
        p.I('v_lshl_add_u32 %s, %s, 4, %s' % (v(vpollA), v(vtmp), v(vpollA)))
        p.I('s_and_b32 s73, s2, 7')
        p.I('s_lshl_b32 s73, s73, 12')
        p.I('v_add_u32 %s, s73, %s' % (v(vpollA), v(vpollA)))
    pollA_reg()
    assert glob.n <= base0, glob.n
    base = base0
    p2.emit_p2_ids(p)
    p3.emit_p3_ids(p)
    p.I('s_lshl_b32 s72, s86, 7')
    p.I('s_lshl_b32 s73, s87, 2')
    p.I('s_add_u32 s72, s72, s73')
    p.I('v_mov_b32 %s, 0x%x' % (v(vtmp), OOB))
    p.I('v_mov_b32 %s, s72' % v(vflagC))
    p.I('v_cmp_eq_u32 vcc, 0, v0')
    p.I('v_cndmask_b32 %s, %s, %s, vcc' % (v(vflagC), v(vtmp), v(vflagC)))
    p.I('s_lshr_b32 s72, s90, 1')
    p.I('s_lshl_b32 s72, s72, 7')
    p.I('v_and_b32 %s, 63, v0' % v(vtmp))
    p.I('v_min_u32 %s, 13, %s' % (v(vtmp), v(vtmp)))
    p.I('v_lshlrev_b32 %s, 2, %s' % (v(vtmp), v(vtmp)))
    p.I('v_add_u32 %s, s72, %s' % (v(vpollC), v(vtmp)))
    ST(p, 21)
    if stamps:
        p.I('s_waitcnt vmcnt(8)')
        ST(p, 22)
    p0.emit_p0_compute(p, va, R0, stats=False)
    ST(p, 2)
    p.I('v_readfirstlane_b32 s%d, %s' % (S_TAG, v(vepoch)))
    p.I('s_add_u32 s%d, s%d, 0x9e3779b9' % (S_TAG, S_TAG))
    ntouch = 0
    if o['touch']:
        p.I('s_barrier')
        tw = va.get(2, 2); td = va.get(2)
        p.I('s_and_b32 s72, s86, 3')
        p.I('s_mul_i32 s72, s72, %d' % (112 * 3584))
        p.I('s_lshl_b32 s73, s87, 8')
        p.I('s_add_u32 s72, s72, s73')
        p.I('v_lshrrev_b32 %s, 1, v0' % v(tw))
        p.I('v_mul_u32_u24 %s, 3584, %s' % (v(tw), v(tw)))
        p.I('v_and_b32 %s, 1, v0' % v(tw + 1))
        p.I('v_lshl_add_u32 %s, %s, 7, %s' % (v(tw), v(tw + 1), v(tw)))
        p.I('v_add_u32 %s, s72, %s' % (v(tw), v(tw)))
        p.I('v_mov_b32 %s, 0x%x' % (v(tw + 1), OOB))
        p.I('v_cmp_gt_u32 vcc, 224, v0')
        p.I('v_cndmask_b32 %s, %s, %s, vcc' % (v(tw), v(tw + 1), v(tw)))
        p.I('buffer_load_dword %s, %s, %s, 0 offen' % (v(td), v(tw), s(R_WG, 4)))
        p.I('buffer_load_dword %s, %s, %s, 0 offen' % (v(td + 1), v(tw), s(R_WU, 4)))
        ntouch = 2
    p1.emit_filter_build(p, va, fst)
    signal(p, vflag, FLAG_A, vtmp, cnt=ntouch)
    ST(p, 3)
    va = Alloc(base, LIM)
    def wd_touch(va, issue=True):
        tw = va.get(); td = vdummy
        p.I('s_lshr_b32 s72, s2, 3')
        p.I('s_mul_i32 s72, s72, 448')
        p.I('v_add_u32 %s, s72, v0' % v(tw))
        p.I('v_lshlrev_b32 %s, 7, %s' % (v(tw), v(tw)))
        p.I('v_mov_b32 %s, 0x%x' % (v(vtmp), OOB))
        p.I('v_cmp_gt_u32 vcc, 224, v0')
        p.I('v_cndmask_b32 %s, %s, %s, vcc' % (v(tw), v(vtmp), v(tw)))
        return [['buffer_load_dword %s, %s, %s, 0 offen' % (v(td), v(tw), s(R_WD, 4))],
                ['s_movk_i32 s72, %d' % (224 * 128), 'buffer_load_dword %s, %s, %s, s72 offen' % (v(vepoch), v(tw), s(R_WD, 4))]]
    LA = p1.P1_LDS_END
    p2.TW = 2
    WS_ = p2.WPriv(p, va, [(LA, 3 * 4096), (0, 4 * 4096)])
    slot = {}
    for st in range(10): slot[st] = (0, st % 3)
    for st in range(10, 14): slot[st] = (1, st - 10)
    for st in range(3): WS_.dma(st, slot[st])
    R1 = p1.emit_p1_addr(p, va)
    mark1 = va.n
    ST(p, 4)
    poll(p, 'A', vpollA, FLAG_A, vtmp)
    ST(p, 5)
    va.n = mark1
    NP1 = o['np1']
    def p1_extra(sch):
        q = sch.add_queue()
        for st in range(NP1):
            e = o['w0'] + o['wstep'] * st
            sch.put(q, ['@waitvm w%d' % st], e)
            for l in WS_.read_lines(st, slot[st]): sch.put(q, l, e, tag='r%d' % st)
            for n, g in enumerate(WS_.dma_lines(st + 3, slot[st + 3])):
                sch.put(q, (['@waitds r%d' % st] if n == 0 else []) + g, e + 5, tag='w%d' % (st + 3))
    def p1_pre():
        pass
    p1.emit_p1_main(p, va, R1, st_=(lambda p, i: stamp(p, i + 3)) if stamps else None, extra=p1_extra, budget=o['budget1'], pre_loop=p1_pre)
    signal(p, vflag, FLAG_B, vtmp)
    ST(p, 8)
    for st in range(max(10, NP1 + 3), 14): WS_.dma(st, slot[st])
    ST(p, 23)
    for st in range(NP1, 14):
        p.waitvm('w%d' % st)
        WS_.reads(st, slot[st])
        if st + 3 < 10:
            p.waitds('r%d' % st)
            WS_.dma(st + 3, slot[st + 3])
    p.I('s_waitcnt lgkmcnt(0)')
    ST(p, 19)
    va = Alloc(base, LIM)
    H = p2.HtDma(p, va)
    R2 = p2.emit_b_addr(p, va)
    wdt = wd_touch(va) if o['touch'] else None
    poll(p, 'B', vpollA, FLAG_B, vtmp)
    ST(p, 9)
    cs = p2.emit_cs_loads(p, va)
    R2.S1, R2.S2 = o['S1'], o['S2']
    def p2_extra(sch):
        if o['touch']:
            q = sch.add_queue()
            for g in wdt: sch.put(q, g, o['S2'] + 2)
    p2.emit_p2_pipe(p, va, R2, cs, H, S_TAG, st_=stamp if stamps else None, budget=o['budget'], extra=p2_extra)
    signal(p, vflagC, FLAG_C, vtmp)
    p.I('s_cmp_lg_u32 s2, 0')
    p.I('s_cselect_b32 s72, 0x%x, 0' % OOB)
    p.I('v_mov_b32 %s, s72' % v(vtmp))
    p.I('v_mov_b32 %s, s%d' % (v(vtmp + 1), S_TAG))
    p.I('v_cmp_eq_u32 vcc, 0, v0')
    p.I('v_mov_b32 %s, 0x%x' % (v(vtmp + 2), OOB))
    p.I('v_cndmask_b32 %s, %s, %s, vcc' % (v(vtmp), v(vtmp + 2), v(vtmp)))
    p.I('buffer_store_dword %s, %s, %s, 0 offen sc1' % (v(vtmp + 1), v(vtmp), s(R_WS, 4)))
    ST(p, 13)
    va = Alloc(base, LIM)
    p3.emit_wd_stage(p, va, 0, 8)
    ST(p, 14)
    poll(p, 'C', vpollC, FLAG_C, vtmp, wide=False)
    ST(p, 15)
    va = Alloc(base, LIM)
    p3.emit_p3_main(p, va, 0, 8192, st_=(lambda p, i: stamp(p, 16)) if stamps else None)
    ST(p, 17)
    p.I('s_waitcnt vmcnt(0)')
    if stamps:
        stamp(p, 18)
        p.I('s_waitcnt vmcnt(0)')
    p.I('s_endpgm')
    p.reset()
    p.L('L_helper')
    va = Alloc(base0, LIM)
    srd(p, R_WS, P_WS, WS_END)
    if o['prefetch_code']:
        p.I('s_getpc_b64 s[94:95]')
        p.L('L_pc2')
        p.I('v_lshlrev_b32 %s, 7, v0' % v(vtmp))
        p.I('v_min_u32 %s, L_end-L_pc2, %s' % (v(vtmp), v(vtmp)))
        p.I('v_mov_b32 %s, s95' % v(vtmp + 1))
        p.I('v_add_co_u32 %s, vcc, s94, %s' % (v(vtmp), v(vtmp)))
        p.I('v_addc_co_u32 %s, vcc, 0, %s, vcc' % (v(vtmp + 1), v(vtmp + 1)))
        p.I('global_load_dword %s, %s, off' % (v(vd2), v(vtmp, 2)))
    hst = p0.emit_helper_stats(p, va)
    ST(p, 7)
    p.I('v_mov_b32 %s, 0' % v(vtmp))
    p.I('buffer_load_dword %s, %s, %s, 0 offen sc1' % (v(vepoch), v(vtmp), s(R_WS, 4)))
    srd(p, R_WG, P_WG, D * F * 2); srd(p, R_WU, P_WU, D * F * 2); srd(p, R_WD, P_WD, D * F * 2)
    hglob = Alloc(LIM - 4, LIM)
    hflag, hpoll = flag_regs(p, hglob)
    va.hi = LIM - 4
    p.I('v_readfirstlane_b32 s88, v0')
    p.I('s_lshr_b32 s88, s88, 6')
    p0.emit_helper_stats_math(p, va, hst)
    p.I('v_readfirstlane_b32 s%d, %s' % (S_TAG, v(vepoch)))
    p.I('s_add_u32 s%d, s%d, 0x9e3779b9' % (S_TAG, S_TAG))
    if stamps: stamp(p, 2)
    signal(p, hflag, FLAG_A, vtmp)
    if stamps: stamp(p, 3)
    va = Alloc(base0, hflag)
    helper.emit_colsum(p, va)
    signal(p, hflag, FLAG_B, vtmp)
    if stamps: stamp(p, 4)
    va = Alloc(base0, hflag)
    if o['touch']:
        vt = va.get(2, 2); dm = va.get(2)
        p.I('s_sub_u32 s72, s2, %d' % NWG)
        p.I('s_mul_i32 s72, s72, 392')
        p.I('v_add_u32 %s, s72, v0' % v(vt))
        p.I('v_lshlrev_b32 %s, 7, %s' % (v(vt), v(vt)))
        p.I('v_add_u32 %s, %d, %s' % (v(vt + 1), 256 * 128, v(vt)))
        p.I('buffer_load_dword %s, %s, %s, 0 offen' % (v(dm), v(vt), s(R_WD, 4)))
        p.I('buffer_load_dword %s, %s, %s, 0 offen' % (v(dm + 1), v(vt + 1), s(R_WD, 4)))
    R2h = helper.emit_stats2_setup(p, va)
    p.I('s_waitcnt vmcnt(0)')
    poll(p, 'HB', hpoll, FLAG_B, vtmp)
    if stamps: stamp(p, 5)
    helper.emit_stats2(p, va, R2h, S_TAG, st_=stamp if stamps else None)
    if stamps: stamp(p, 6)
    p.I('s_waitcnt vmcnt(0)')
    p.L('L_end')
    p.I('s_endpgm')
    body, ins = finish(p)
    t, kd = kernel_text(name, body)
    txt = HEADER % ('; @launch grid=(%d,1,1) block=(256,1,1) lds=%d' % (NGRID, 163840)) + t + '.section .rodata,"a"\n.p2align 6\n' + kd
    n = sum(1 for i in ins if i.is_real())
    print('%s: %d instructions, %d nops' % (fname, n, sum(1 for i in ins if i.op == 's_nop')))
    open(fname, 'w').write(txt)

NAMES = {0: 'start', 1: 'kernarg', 2: 'P0 stores issued', 3: 'flag A sent', 4: 'W staged', 5: 'A seen', 6: 'P1 kv in LDS', 7: 'P1 mfma done',
         8: 'flag B sent', 9: 'B seen', 10: 'hT landed', 11: 'stats2 ok', 12: 'P2 mfma done', 13: 'flag C sent', 14: 'Wd staged', 15: 'C seen',
         19: 'W2 staged', 23: 'W2 dma issued', 24: 'W2 st6 landed', 25: 'W2 st9 landed', 26: 'W2 st12 landed', 20: 'P0 loads issued', 21: 'setup done', 22: 'P0 data arrived', 16: 'P3 mfma done', 17: 'out stores issued', 18: 'end'}
if __name__ == '__main__':
    build(False, 'ps.s')
    build(True, 'ps_st.s')
    build(False, 'ps_nopf.s', dict(prefetch_code=False))
    build(False, 'ps_notouch.s', dict(touch=False))
```

```python
import sys
from common import *
import p0, p1, p2, p3
STAMPS = False
def prologue(p, kidx=0):
    p.I('s_cmp_ge_u32 s2, %d' % NWG)
    p.I('s_cbranch_scc1 L_end_%s' % p.name)
    if STAMPS: stamp_take(p)
    load_kernargs(p)
    p.I('s_waitcnt lgkmcnt(0)')
    srd(p, R_Q, P_Q, S * D * 2); srd(p, R_K, P_K, S * D * 2); srd(p, R_V, P_V, S * D * 2); srd(p, R_WS, P_WS, WS_END)
    srd(p, R_SH, P_SH, D * 8); srd(p, R_SD, P_SD, D * 2)
    if STAMPS:
        stamp_init(p, kidx); stamp_put(p, 0); stamp(p, 1)
def epi(p):
    if STAMPS: stamp(p, 14)
    p.I('s_waitcnt vmcnt(0)')
    if STAMPS:
        stamp(p, 15)
        p.I('s_waitcnt vmcnt(0)')
def k_p0():
    p = Prog(); p.name = 'p0_kernel'
    prologue(p, 0)
    va = Alloc(1, 250)
    p0.emit_p0(p, va)
    epi(p)
    p.L('L_end_' + p.name)
    p.I('s_endpgm')
    return p
def k_p1():
    p = Prog(); p.name = 'p1_kernel'
    prologue(p, 1)
    va = Alloc(1, 250)
    R = p1.emit_p1_addr(p, va)
    mark = va.n
    p1.emit_filter_prep(p, va)
    if STAMPS: stamp(p, 2)
    va.n = mark
    p1.emit_p1_main(p, va, R, st_=stamp if STAMPS else None)
    epi(p)
    p.L('L_end_' + p.name)
    p.I('s_endpgm')
    return p
def k_p2():
    p = Prog(); p.name = 'p2_kernel'
    prologue(p, 2)
    srd(p, R_WG, P_WG, D * F * 2); srd(p, R_WU, P_WU, D * F * 2)
    p2.emit_p2_ids(p)
    va = Alloc(1, 250)
    mark = va.n
    ones = va.get(4, 4)
    for i in range(4): p.I('v_mov_b32 v%d, 0x3f803f80' % (ones + i))
    p2.emit_w_stage(p, va, 0, 4, colsum=(p2.CS_A, ones))
    p.I('s_barrier')
    if STAMPS: stamp(p, 2)
    va.n = mark
    p2.emit_ht_dma(p, va)
    R = p2.emit_b_addr(p, va)
    cs = p2.emit_cs_copy(p, va)
    p.I('s_waitcnt vmcnt(0)')
    p.I('s_barrier')
    if STAMPS: stamp(p, 3)
    p2.emit_stats(p, va, R)
    if STAMPS: stamp(p, 4)
    p2.emit_p2_main(p, va, R, cs, st_=stamp if STAMPS else None)
    epi(p)
    p.L('L_end_' + p.name)
    p.I('s_endpgm')
    return p
def k_p3(name='p3_kernel'):
    p = Prog(); p.name = name
    prologue(p, 3)
    srd(p, R_WD, P_WD, D * F * 2); srd(p, R_OUT, P_OUT, S * D * 2)
    p3.emit_p3_ids(p)
    va = Alloc(1, 250)
    p3.emit_wd_stage(p, va, 0, 4)
    if STAMPS: stamp(p, 2)
    va.n = 1
    p3.emit_p3_main(p, va, 65536, 65536 + 8192, st_=stamp if STAMPS else None)
    epi(p)
    p.L('L_end_' + p.name)
    p.I('s_endpgm')
    return p
P3_LDS = 65536 + 8192 + 2 * p3.RED_T
def build(kernels, fname):
    hdr = '\n'.join('; @launch kernel=%s grid=(%d,1,1) block=(256,1,1) lds=%d' % (k.name, g, l) for k, g, l in kernels)
    txt = HEADER % hdr
    kds = ''
    for k, g, l in kernels:
        body, ins = finish(k)
        t, kd = kernel_text(k.name, body)
        txt += t; kds += kd
        n = sum(1 for i in ins if i.is_real())
        print('%s: %d instructions, %d nops' % (k.name, n, sum(1 for i in ins if i.op == 's_nop')))
    txt += '.section .rodata,"a"\n.p2align 6\n' + kds.replace('.amdhsa_kernel', '.p2align 6\n.amdhsa_kernel')
    open(fname, 'w').write(txt)
if __name__ == '__main__':
    build([(k_p0(), NWG, 0)], 't_p0.s')
    build([(k_p0(), NWG, 0), (k_p1(), NWG, p1.P1_LDS_END)], 't_p1.s')
    build([(k_p0(), NWG, 0), (k_p1(), NWG, p1.P1_LDS_END), (k_p2(), NWG, p2.P2_LDS_END)], 't_p2.s')
    build([(k_p0(), NWG, 0), (k_p1(), NWG, p1.P1_LDS_END), (k_p2(), NWG, p2.P2_LDS_END), (k_p3(), NWG, P3_LDS)], 't_p3.s')
    def k_empty(name):
        p = Prog(); p.name = name
        p.I('s_endpgm')
        return p
    base = lambda: [(k_p0(), NWG, 0), (k_p1(), NWG, p1.P1_LDS_END), (k_p2(), NWG, p2.P2_LDS_END), (k_p3(), NWG, P3_LDS)]
    build(base(), 'x_b0.s')
    build([(k_empty('e0_kernel'), 256, 163840)] + base(), 'x_b1.s')
    build([(k_empty('e0_kernel'), 256, 0)] + base(), 'x_b2.s')
    b = base(); b[0] = (b[0][0], NWG, 163840)
    build(b, 'x_b3.s')
```

```python
import sys
from common import *
import p0, p1, p2, p3, helper

FLAG_A = WS_FLAGS
FLAG_B = WS_FLAGS + 0x8000
FLAG_C = WS_FLAGS + 0x10000
S_TAG = 93
SPIN_MAX = 400000
NGRID = 256

def flag_regs(p, va):
    vflag = va.get(); vpoll = va.get(); t = va.get()
    p.I('s_lshr_b32 s72, s2, 3')
    p.I('s_lshl_b32 s72, s72, 7')
    p.I('s_and_b32 s73, s2, 7')
    p.I('s_lshl_b32 s74, s73, 2')
    p.I('s_add_u32 s72, s72, s74')
    p.I('v_lshlrev_b32 %s, 12, v0' % v(vflag))
    p.I('v_add_u32 %s, s72, %s' % (v(vflag), v(vflag)))
    p.I('v_mov_b32 %s, 0x%x' % (v(t), OOB))
    p.I('v_cmp_gt_u32 vcc, 8, v0')
    p.I('v_cndmask_b32 %s, %s, %s, vcc' % (v(vflag), v(t), v(vflag)))
    p.I('v_and_b32 %s, 63, v0' % v(t))
    p.I('v_min_u32 %s, 55, %s' % (v(t), v(t)))
    p.I('v_lshrrev_b32 %s, 1, %s' % (v(vpoll), v(t)))
    p.I('v_lshlrev_b32 %s, 7, %s' % (v(vpoll), v(vpoll)))
    p.I('v_and_b32 %s, 1, %s' % (v(t), v(t)))
    p.I('v_lshl_add_u32 %s, %s, 4, %s' % (v(vpoll), v(t), v(vpoll)))
    p.I('s_lshl_b32 s73, s73, 12')
    p.I('v_add_u32 %s, s73, %s' % (v(vpoll), v(vpoll)))
    return vflag, vpoll

def signal(p, voff, base, tmp, cnt=0):
    p.I('s_waitcnt vmcnt(%d)' % cnt)
    p.I('s_barrier')
    p.I('s_mov_b32 s100, 0x%x' % base)
    p.I('v_mov_b32 %s, s%d' % (v(tmp), S_TAG))
    p.I('buffer_store_dword %s, %s, %s, s100 offen sc1' % (v(tmp), v(voff), s(R_WS, 4)))

def poll(p, name, voff, base, tmp, wide=True):
    p.I('s_cmp_lg_u32 s88, 0')
    p.push()
    p.keep(); p.I('s_cbranch_scc1 L_%s_done' % name)
    p.I('s_mov_b32 s100, 0x%x' % base)
    p.I('s_mov_b32 s101, 0')
    p.I('s_waitcnt vmcnt(0)')
    p.keep(); p.L('L_%s_loop' % name)
    if wide:
        p.I('buffer_load_dwordx4 %s, %s, %s, s100 offen sc1' % (v(tmp, 4), v(voff), s(R_WS, 4)))
        for i in range(4):
            p.I('v_xor_b32 %s, s%d, %s' % (v(tmp + i), S_TAG, v(tmp + i)))
        p.I('v_or3_b32 %s, %s, %s, %s' % (v(tmp), v(tmp), v(tmp + 1), v(tmp + 2)))
        p.I('v_or_b32 %s, %s, %s' % (v(tmp), v(tmp), v(tmp + 3)))
    else:
        p.I('buffer_load_dword %s, %s, %s, s100 offen sc1' % (v(tmp), v(voff), s(R_WS, 4)))
        p.I('v_xor_b32 %s, s%d, %s' % (v(tmp), S_TAG, v(tmp)))
    p.I('v_cmp_ne_u32 vcc, 0, %s' % v(tmp))
    p.I('s_add_u32 s101, s101, 1')
    p.I('s_cmp_gt_u32 s101, %d' % SPIN_MAX)
    p.keep(); p.I('s_cbranch_scc1 L_%s_done' % name)
    p.keep(); p.I('s_cbranch_vccnz L_%s_loop' % name)
    p.pop()
    p.keep(); p.L('L_%s_done' % name)
    p.I('s_barrier')

def build(stamps=False, fname=None, opts=None):
    o = dict(prefetch_code=True, touch=True, nA=3, budget=6.0, S1=90, S2=112, np1=7, w0=4, wstep=12, budget1=5.0)
    o.update(opts or {})
    DBGMAP = {0: 0, 1: 1, 20: 2, 22: 3, 2: 4, 3: 5, 5: 6, 6: 7, 7: 8, 8: 9, 9: 10, 11: 11, 12: 12, 13: 13, 15: 14, 18: 15}
    import common
    if o.get('dbg') is not None:
        def stamp_put(p, idx):
            p.I('s_waitcnt lgkmcnt(0)')
            if idx not in DBGMAP: return
            p.I('v_mov_b32 v252, s96')
            p.I('buffer_store_dword v252, v250, s[24:27], 0 offen offset:%d' % (DBGMAP[idx] * 4))
        def stamp(p, idx):
            if idx not in DBGMAP: return
            stamp_take(p); stamp_put(p, idx)
        def stamp_init(p, k):
            p.I('s_mov_b32 s24, s26'); p.I('s_and_b32 s25, s27, 0xffff'); p.I('s_mov_b32 s26, 256'); p.I('s_mov_b32 s27, 0x20000')
            p.I('s_cmp_eq_u32 s2, %d' % o['dbg'])
            p.I('s_cselect_b32 s100, 0, 0x%x' % OOB)
            p.I('v_cmp_eq_u32 vcc, 0, v0')
            p.I('v_mov_b32 v250, 0x%x' % OOB)
            p.I('v_mov_b32 v252, s100')
            p.I('v_cndmask_b32 v250, v250, v252, vcc')
    else:
        stamp, stamp_put, stamp_init = common.stamp, common.stamp_put, common.stamp_init
    ST = stamp if stamps else (lambda p, i: None)
    p = Prog(); name = KNAME + '_kernel'; p.name = name
    p.I('s_cmp_ge_u32 s2, %d' % NGRID)
    p.I('s_cbranch_scc1 L_end')
    if stamps: stamp_take(p)
    load_kernargs(p)
    LIM = 250 if stamps else 256
    glob = Alloc(1, LIM)
    vdummy = glob.get()
    vtmp = glob.get(4, 4)
    if o['prefetch_code']:
        p.I('s_getpc_b64 s[94:95]')
        p.keep(); p.L('L_pc')
        p.I('v_lshlrev_b32 %s, 7, v0' % v(vtmp))
        p.I('v_min_u32 %s, L_end-L_pc, %s' % (v(vtmp), v(vtmp)))
        p.I('v_mov_b32 %s, s95' % v(vtmp + 1))
        p.I('v_add_co_u32 %s, vcc, s94, %s' % (v(vtmp), v(vtmp)))
        p.I('v_addc_co_u32 %s, vcc, 0, %s, vcc' % (v(vtmp + 1), v(vtmp + 1)))
        p.I('global_load_dword %s, %s, off' % (v(vdummy), v(vtmp, 2)))
    p.I('s_waitcnt lgkmcnt(0)')
    srd(p, R_K, P_K, S * D * 2); srd(p, R_V, P_V, S * D * 2); srd(p, R_Q, P_Q, S * D * 2)
    srd(p, R_SH, P_SH, D * 8)
    srd(p, R_OUT, P_OUT, S * D * 2)
    if stamps:
        srd(p, R_WS, P_WS, WS_END)
        stamp_init(p, 0); stamp_put(p, 0); stamp(p, 1)
    vflag = None
    base0 = glob.n + 7
    p.I('s_cmp_ge_u32 s2, %d' % NWG)
    p.keep()
    p.I('s_cbranch_scc1 L_helper')
    va = Alloc(base0, LIM)
    R0 = p0.emit_p0_loads(p, va, stats=False)
    ST(p, 20)
    fst = p1.emit_filter_loads(p, va)
    srd(p, R_WS, P_WS, WS_END); srd(p, R_SD, P_SD, D * 2)
    srd(p, R_WG, P_WG, D * F * 2); srd(p, R_WU, P_WU, D * F * 2); srd(p, R_WD, P_WD, D * F * 2)
    vepoch = glob.get()
    p.I('v_mov_b32 %s, 0' % v(vtmp))
    p.I('buffer_load_dword %s, %s, %s, 0 offen sc1' % (v(vepoch), v(vtmp), s(R_WS, 4)))
    vd2 = vdummy
    vflag, vpoll = flag_regs(p, glob)
    vflagC = glob.get(); vpollC = glob.get(); vpollA = glob.get()
    def pollA_reg():
        p.I('v_and_b32 %s, 63, v0' % v(vtmp))
        p.I('v_lshrrev_b32 %s, 1, %s' % (v(vpollA), v(vtmp)))
        p.I('v_lshlrev_b32 %s, 7, %s' % (v(vpollA), v(vpollA)))
        p.I('v_and_b32 %s, 1, %s' % (v(vtmp), v(vtmp)))
        p.I('v_lshl_add_u32 %s, %s, 4, %s' % (v(vpollA), v(vtmp), v(vpollA)))
        p.I('s_and_b32 s73, s2, 7')
        p.I('s_lshl_b32 s73, s73, 12')
        p.I('v_add_u32 %s, s73, %s' % (v(vpollA), v(vpollA)))
    pollA_reg()
    assert glob.n <= base0, glob.n
    base = base0
    p2.emit_p2_ids(p)
    p3.emit_p3_ids(p)
    p.I('s_lshl_b32 s72, s86, 7')
    p.I('s_lshl_b32 s73, s87, 2')
    p.I('s_add_u32 s72, s72, s73')
    p.I('v_mov_b32 %s, 0x%x' % (v(vtmp), OOB))
    p.I('v_mov_b32 %s, s72' % v(vflagC))
    p.I('v_cmp_eq_u32 vcc, 0, v0')
    p.I('v_cndmask_b32 %s, %s, %s, vcc' % (v(vflagC), v(vtmp), v(vflagC)))
    p.I('s_lshr_b32 s72, s90, 1')
    p.I('s_lshl_b32 s72, s72, 7')
    p.I('v_and_b32 %s, 63, v0' % v(vtmp))
    p.I('v_min_u32 %s, 13, %s' % (v(vtmp), v(vtmp)))
    p.I('v_lshlrev_b32 %s, 2, %s' % (v(vtmp), v(vtmp)))
    p.I('v_add_u32 %s, s72, %s' % (v(vpollC), v(vtmp)))
    ST(p, 21)
    if stamps:
        p.I('s_waitcnt vmcnt(8)')
        ST(p, 22)
    p0.emit_p0_compute(p, va, R0, stats=False)
    ST(p, 2)
    p.I('v_readfirstlane_b32 s%d, %s' % (S_TAG, v(vepoch)))
    p.I('s_add_u32 s%d, s%d, 0x9e3779b9' % (S_TAG, S_TAG))
    ntouch = 0
    if o['touch']:
        p.I('s_barrier')
        tw = va.get(2, 2); td = va.get(2)
        p.I('s_and_b32 s72, s86, 3')
        p.I('s_mul_i32 s72, s72, %d' % (112 * 3584))
        p.I('s_lshl_b32 s73, s87, 8')
        p.I('s_add_u32 s72, s72, s73')
        p.I('v_lshrrev_b32 %s, 1, v0' % v(tw))
        p.I('v_mul_u32_u24 %s, 3584, %s' % (v(tw), v(tw)))
        p.I('v_and_b32 %s, 1, v0' % v(tw + 1))
        p.I('v_lshl_add_u32 %s, %s, 7, %s' % (v(tw), v(tw + 1), v(tw)))
        p.I('v_add_u32 %s, s72, %s' % (v(tw), v(tw)))
        p.I('v_mov_b32 %s, 0x%x' % (v(tw + 1), OOB))
        p.I('v_cmp_gt_u32 vcc, 224, v0')
        p.I('v_cndmask_b32 %s, %s, %s, vcc' % (v(tw), v(tw + 1), v(tw)))
        p.I('buffer_load_dword %s, %s, %s, 0 offen' % (v(td), v(tw), s(R_WG, 4)))
        p.I('buffer_load_dword %s, %s, %s, 0 offen' % (v(td + 1), v(tw), s(R_WU, 4)))
        ntouch = 2
    p1.emit_filter_build(p, va, fst)
    signal(p, vflag, FLAG_A, vtmp, cnt=ntouch)
    ST(p, 3)
    va = Alloc(base, LIM)
    def wd_touch(va, issue=True):
        tw = va.get(); td = vdummy
        p.I('s_lshr_b32 s72, s2, 3')
        p.I('s_mul_i32 s72, s72, 448')
        p.I('v_add_u32 %s, s72, v0' % v(tw))
        p.I('v_lshlrev_b32 %s, 7, %s' % (v(tw), v(tw)))
        p.I('v_mov_b32 %s, 0x%x' % (v(vtmp), OOB))
        p.I('v_cmp_gt_u32 vcc, 224, v0')
        p.I('v_cndmask_b32 %s, %s, %s, vcc' % (v(tw), v(vtmp), v(tw)))
        return [['buffer_load_dword %s, %s, %s, 0 offen' % (v(td), v(tw), s(R_WD, 4))],
                ['s_movk_i32 s72, %d' % (224 * 128), 'buffer_load_dword %s, %s, %s, s72 offen' % (v(vepoch), v(tw), s(R_WD, 4))]]
    LA = p1.P1_LDS_END
    p2.TW = 2
    WS_ = p2.WPriv(p, va, [(LA, 3 * 4096), (0, 4 * 4096)])
    slot = {}
    for st in range(10): slot[st] = (0, st % 3)
    for st in range(10, 14): slot[st] = (1, st - 10)
    for st in range(3): WS_.dma(st, slot[st])
    R1 = p1.emit_p1_addr(p, va)
    mark1 = va.n
    ST(p, 4)
    poll(p, 'A', vpollA, FLAG_A, vtmp)
    ST(p, 5)
    va.n = mark1
    NP1 = o['np1']
    def p1_extra(sch):
        q = sch.add_queue()
        for st in range(NP1):
            e = o['w0'] + o['wstep'] * st
            sch.put(q, ['@waitvm w%d' % st], e)
            for l in WS_.read_lines(st, slot[st]): sch.put(q, l, e, tag='r%d' % st)
            for n, g in enumerate(WS_.dma_lines(st + 3, slot[st + 3])):
                sch.put(q, (['@waitds r%d' % st] if n == 0 else []) + g, e + 5, tag='w%d' % (st + 3))
    def p1_pre():
        pass
    p1.emit_p1_main(p, va, R1, st_=(lambda p, i: stamp(p, i + 3)) if stamps else None, extra=p1_extra, budget=o['budget1'], pre_loop=p1_pre)
    signal(p, vflag, FLAG_B, vtmp)
    ST(p, 8)
    for st in range(max(10, NP1 + 3), 14): WS_.dma(st, slot[st])
    ST(p, 23)
    for st in range(NP1, 14):
        p.waitvm('w%d' % st)
        WS_.reads(st, slot[st])
        if st + 3 < 10:
            p.waitds('r%d' % st)
            WS_.dma(st + 3, slot[st + 3])
    p.I('s_waitcnt lgkmcnt(0)')
    ST(p, 19)
    va = Alloc(base, LIM)
    H = p2.HtDma(p, va)
    R2 = p2.emit_b_addr(p, va)
    wdt = wd_touch(va) if o['touch'] else None
    poll(p, 'B', vpollA, FLAG_B, vtmp)
    ST(p, 9)
    cs = p2.emit_cs_loads(p, va)
    R2.S1, R2.S2 = o['S1'], o['S2']
    def p2_extra(sch):
        if o['touch']:
            q = sch.add_queue()
            for g in wdt: sch.put(q, g, o['S2'] + 2)
    p2.emit_p2_pipe(p, va, R2, cs, H, S_TAG, st_=stamp if stamps else None, budget=o['budget'], extra=p2_extra)
    signal(p, vflagC, FLAG_C, vtmp)
    p.I('s_cmp_lg_u32 s2, 0')
    p.I('s_cselect_b32 s72, 0x%x, 0' % OOB)
    p.I('v_mov_b32 %s, s72' % v(vtmp))
    p.I('v_mov_b32 %s, s%d' % (v(vtmp + 1), S_TAG))
    p.I('v_cmp_eq_u32 vcc, 0, v0')
    p.I('v_mov_b32 %s, 0x%x' % (v(vtmp + 2), OOB))
    p.I('v_cndmask_b32 %s, %s, %s, vcc' % (v(vtmp), v(vtmp + 2), v(vtmp)))
    p.I('buffer_store_dword %s, %s, %s, 0 offen sc1' % (v(vtmp + 1), v(vtmp), s(R_WS, 4)))
    ST(p, 13)
    va = Alloc(base, LIM)
    p3.emit_wd_stage(p, va, 0, 8)
    ST(p, 14)
    poll(p, 'C', vpollC, FLAG_C, vtmp, wide=False)
    ST(p, 15)
    va = Alloc(base, LIM)
    p3.emit_p3_main(p, va, 0, 8192, st_=(lambda p, i: stamp(p, 16)) if stamps else None)
    ST(p, 17)
    p.I('s_waitcnt vmcnt(0)')
    if stamps:
        stamp(p, 18)
        p.I('s_waitcnt vmcnt(0)')
    p.I('s_endpgm')
    p.reset()
    p.L('L_helper')
    va = Alloc(base0, LIM)
    srd(p, R_WS, P_WS, WS_END)
    if o['prefetch_code']:
        p.I('s_getpc_b64 s[94:95]')
        p.L('L_pc2')
        p.I('v_lshlrev_b32 %s, 7, v0' % v(vtmp))
        p.I('v_min_u32 %s, L_end-L_pc2, %s' % (v(vtmp), v(vtmp)))
        p.I('v_mov_b32 %s, s95' % v(vtmp + 1))
        p.I('v_add_co_u32 %s, vcc, s94, %s' % (v(vtmp), v(vtmp)))
        p.I('v_addc_co_u32 %s, vcc, 0, %s, vcc' % (v(vtmp + 1), v(vtmp + 1)))
        p.I('global_load_dword %s, %s, off' % (v(vd2), v(vtmp, 2)))
    hst = p0.emit_helper_stats(p, va)
    ST(p, 7)
    p.I('v_mov_b32 %s, 0' % v(vtmp))
    p.I('buffer_load_dword %s, %s, %s, 0 offen sc1' % (v(vepoch), v(vtmp), s(R_WS, 4)))
    srd(p, R_WG, P_WG, D * F * 2); srd(p, R_WU, P_WU, D * F * 2); srd(p, R_WD, P_WD, D * F * 2)
    hglob = Alloc(LIM - 4, LIM)
    hflag, hpoll = flag_regs(p, hglob)
    va.hi = LIM - 4
    p.I('v_readfirstlane_b32 s88, v0')
    p.I('s_lshr_b32 s88, s88, 6')
    p0.emit_helper_stats_math(p, va, hst)
    p.I('v_readfirstlane_b32 s%d, %s' % (S_TAG, v(vepoch)))
    p.I('s_add_u32 s%d, s%d, 0x9e3779b9' % (S_TAG, S_TAG))
    if stamps: stamp(p, 2)
    signal(p, hflag, FLAG_A, vtmp)
    if stamps: stamp(p, 3)
    va = Alloc(base0, hflag)
    helper.emit_colsum(p, va)
    signal(p, hflag, FLAG_B, vtmp)
    if stamps: stamp(p, 4)
    va = Alloc(base0, hflag)
    if o['touch']:
        vt = va.get(2, 2); dm = va.get(2)
        p.I('s_sub_u32 s72, s2, %d' % NWG)
        p.I('s_mul_i32 s72, s72, 392')
        p.I('v_add_u32 %s, s72, v0' % v(vt))
        p.I('v_lshlrev_b32 %s, 7, %s' % (v(vt), v(vt)))
        p.I('v_add_u32 %s, %d, %s' % (v(vt + 1), 256 * 128, v(vt)))
        p.I('buffer_load_dword %s, %s, %s, 0 offen' % (v(dm), v(vt), s(R_WD, 4)))
        p.I('buffer_load_dword %s, %s, %s, 0 offen' % (v(dm + 1), v(vt + 1), s(R_WD, 4)))
    R2h = helper.emit_stats2_setup(p, va)
    p.I('s_waitcnt vmcnt(0)')
    poll(p, 'HB', hpoll, FLAG_B, vtmp)
    if stamps: stamp(p, 5)
    helper.emit_stats2(p, va, R2h, S_TAG, st_=stamp if stamps else None)
    if stamps: stamp(p, 6)
    p.I('s_waitcnt vmcnt(0)')
    p.L('L_end')
    p.I('s_endpgm')
    body, ins = finish(p)
    t, kd = kernel_text(name, body)
    txt = HEADER % ('; @launch grid=(%d,1,1) block=(256,1,1) lds=%d' % (NGRID, 163840)) + t + '.section .rodata,"a"\n.p2align 6\n' + kd
    n = sum(1 for i in ins if i.is_real())
    print('%s: %d instructions, %d nops' % (fname, n, sum(1 for i in ins if i.op == 's_nop')))
    open(fname, 'w').write(txt)

NAMES = {0: 'start', 1: 'kernarg', 2: 'P0 stores issued', 3: 'flag A sent', 4: 'W staged', 5: 'A seen', 6: 'P1 kv in LDS', 7: 'P1 mfma done',
         8: 'flag B sent', 9: 'B seen', 10: 'hT landed', 11: 'stats2 ok', 12: 'P2 mfma done', 13: 'flag C sent', 14: 'Wd staged', 15: 'C seen',
         19: 'W2 staged', 23: 'W2 dma issued', 24: 'W2 st6 landed', 25: 'W2 st9 landed', 26: 'W2 st12 landed', 20: 'P0 loads issued', 21: 'setup done', 22: 'P0 data arrived', 16: 'P3 mfma done', 17: 'out stores issued', 18: 'end'}
if __name__ == '__main__':
    build(False, 'ps.s')
    build(True, 'ps_st.s')
    build(True, 'ps_dbg0.s', dict(dbg=0))
    build(True, 'ps_dbg1.s', dict(dbg=100))
```
